```python
import torch

def _softmax(x, axis=-1):
    return torch.softmax(x, dim=axis)
def _gelu(x):
    return torch.nn.functional.gelu(x, approximate="tanh")
def _silu(x):
    return torch.nn.functional.silu(x)
def _sigmoid(x):
    return torch.sigmoid(x)
def _layernorm(x, axis=-1, eps=1e-5):
    m = x.mean(dim=axis, keepdim=True)
    v = x.var(dim=axis, keepdim=True, unbiased=False)
    return (x - m) / torch.sqrt(v + eps)
def _scatter_add(tgt, idx, src, axis=0):
    return tgt.clone().index_add_(axis, idx, src)
def _segment_sum(src, seg, n):
    out = torch.zeros((n,) + src.shape[1:], dtype=src.dtype)
    return out.index_add_(0, seg, src)
def _pad(x, pw):
    flat = tuple(v for pair in reversed(pw) for v in pair)
    return torch.nn.functional.pad(x, flat)

kernel_name = 'standalone__fused_io_aware_attn__prompt'

def setup_inputs():

    _w = (lambda a: (lambda t: t.to(torch.bfloat16) if t.is_floating_point() else t)(torch.as_tensor(a)))
    B, H, S = 2, 32, 2048
    Dh = max(1, 640 // 32)
    return {
        "q": _w((lambda *s: torch.randn(*s, dtype=torch.bfloat16) * 0.8)(B, H, S, Dh)),
        "k": _w((lambda *s: torch.randn(*s, dtype=torch.bfloat16) * 0.8)(B, H, S, Dh)),
        "v": _w((lambda *s: torch.randn(*s, dtype=torch.bfloat16) * 0.05)(B, H, S, Dh)),
    }

def reference(q, k, v):
    scale = q.shape[-1] ** -0.5
    s = torch.einsum('bhqd,bhkd->bhqk', q, k) * scale
    p = _softmax(s, axis=-1)
    return torch.einsum('bhqk,bhkd->bhqd', p, v)
```

```python
import sys, math, struct, re, argparse

NAME = "standalone__fused_io_aware_attn__prompt"
def f32bits(x): return struct.unpack("<I", struct.pack("<f", x))[0]
def vr(b, n=1): return f"v[{b}:{b+n-1}]" if n > 1 else f"v{b}"
def sr(b, n=1): return f"s[{b}:{b+n-1}]" if n > 1 else f"s{b}"

V_TID = 0
V_T = 1
V_O = 8
V_S = V_O + 64
V_Q = V_S + 96
V_QT = V_Q + 16
V_KM = V_QT + 4
V_KT = V_KM + 4
V_VA = V_KT + 2
V_VB = V_VA + 4
V_K1M = V_VB + 4
V_K1T = V_K1M + 4
V_IDX = V_K1T + 2
V_AK = V_IDX + 1
V_AV = V_AK + 1
V_INC = V_AV + 1
V_ROW = V_INC + 1
V_ROWL = V_ROW + 1
V_DMA = V_ROWL + 1
V_END = V_DMA + 1

S_Q, S_K, S_V, S_O, S_D = 12, 16, 20, 24, 28
S_W, S_HB, S_Q0, S_Q1, S_K0, S_DOFF, S_C, S_MSK, S_CNT, S_INC, S_T0, S_T1, S_T2, S_T3 = range(32, 46)
S_STAMP = 48
TOTAL_BYTES = 2*32*2048*20*2
HEAD_BYTES = 2048*40
HALF_BYTES = 1024*40
L_ONES = 0
L_K = [4096 - 2048, 4096 + 38912 - 2048]
L_V = [81920, 122880]
LDS_BYTES = 163840

class Gen:
    def __init__(self, cfg):
        self.cfg = cfg
        self.L = []
        self.vm = []
    def e(self, *xs):
        for x in xs:
            if isinstance(x, (list, tuple)): self.e(*x)
            else: self.L.append(x)
    def vmem(self, ins, tag):
        self.e(ins); self.vm.append(tag)
    def vmwait(self, tag):
        i = max(k for k, t in enumerate(self.vm) if t == tag)
        n = len(self.vm) - 1 - i
        return f"s_waitcnt vmcnt({n})"
    def stamp(self, k):
        if self.cfg.stamps:
            self.e(f"s_memtime {sr(S_STAMP + 2*k, 2)}")

    def dma_round(self, n):
        out = []
        if n >= 2 and n % 2 == 0:
            out.append(f"s_add_u32 m0, m0, 4096")
            out.append(f"s_add_u32 s{S_DOFF}, s{S_DOFF}, 4096")
        off = (n & 1) * 2048
        out.append(("VM", f"buffer_load_dwordx4 v{V_DMA}, {sr(S_D,4)}, s{S_DOFF} offen" + (f" offset:{off}" if off else "") + " lds", f"r{n}"))
        return out
    def emit_items(self, items):
        for it in items:
            if isinstance(it, tuple) and it[0] == "VM": self.vmem(it[1], it[2])
            elif callable(it): self.e(it())
            else: self.e(it)

    def qconv(self, r, t0, t1):
        return [f"v_lshlrev_b32 v{t0}, 16, v{r}",
                f"v_and_b32 v{t1}, s{S_MSK}, v{r}",
                f"v_mul_f32 v{t0}, s{S_C}, v{t0}",
                f"v_mul_f32 v{t1}, s{S_C}, v{t1}",
                f"v_cvt_pk_bf16_f32 v{r}, v{t0}, v{t1}"]
    def qconv_many(self, regs):
        out = []
        for i in range(0, len(regs), 2):
            a = self.qconv(regs[i], V_T, V_T+1); b = self.qconv(regs[i+1], V_T+2, V_T+3)
            for x, y in zip(a, b): out += [x, y]
        return out

    def m2b(self, sbuf, kt, pair, c="0"):
        return f"v_mfma_f32_32x32x4_2b_bf16 {vr(sbuf,32)}, {vr(kt,2)}, {vr(V_QT+2*pair,2)}, {c} cbsz:1 abid:0"
    def m0(self, sbuf, km, pair, i):
        d = sbuf + 16*i
        return f"v_mfma_f32_32x32x16_bf16 {vr(d,16)}, {vr(km,4)}, {vr(V_Q+8*pair+4*i,4)}, {vr(d,16)}"
    def smf(self, pair, i, vreg, sbuf, half):
        return f"v_smfmac_f32_32x32x32_bf16 {vr(V_O+32*pair+16*i,16)}, {vr(vreg,4)}, {vr(sbuf+16*i+8*half,8)}, v{V_IDX}"

    def slot(self, j, km=V_KM, kt=V_KT, koff=None, voff=None, do_qk=True, do_pv=True, waits=True,
             extras=None, prio=None, kload=True, vload=True):
        extras = extras or {}
        sc = V_S + 32*(j % 3); sn = V_S + 32*((j+1) % 3); sp = V_S + 32*((j-1) % 3)
        pn = (j+1) & 1; pp = (j-1) & 1
        even = (j & 1) == 0
        ex = [f"v_exp_f32 v{sc+i}, v{sc+i}" for i in range(32)]
        def ds(kind):
            if not even: return []
            if kind == 'kt': return [f"ds_read_b64 {vr(V_KT,2)}, v{V_AK} offset:{koff+32}"] if kload else []
            if kind == 'km': return [f"ds_read_b128 {vr(V_KM,4)}, v{V_AK} offset:{koff}"] if kload else []
            if kind == 'va': return [f"ds_read_b64_tr_b16 {vr(V_VA,2)}, v{V_AV} offset:{voff}", f"ds_read_b64_tr_b16 {vr(V_VA+2,2)}, v{V_AV} offset:{voff+160}"] if vload else []
            if kind == 'vb': return [f"ds_read_b64_tr_b16 {vr(V_VB,2)}, v{V_AV} offset:{voff+640}", f"ds_read_b64_tr_b16 {vr(V_VB+2,2)}, v{V_AV} offset:{voff+800}"] if vload else []
        def w(n):
            if even or not waits: return []
            if isinstance(waits, dict): return [f"s_waitcnt lgkmcnt({waits[n]})"] if n in waits else []
            return [f"s_waitcnt lgkmcnt({n})"]
        X = lambda k: extras.get(k, [])
        qk = lambda x: [x] if do_qk else []
        pv = lambda x: [x] if do_pv else []
        seq = []
        if prio is not None: seq.append(f"s_setprio {prio}")
        seq += X(0) + w(5) + qk(self.m2b(sn, kt, pn)) + ds('kt') + ex[0:4] + X(1) + ex[4:8]
        seq += w(3) + pv(self.smf(pp, 0, V_VA, sp, 0)) + X(2) + ex[8:12]
        seq += pv(self.smf(pp, 1, V_VA, sp, 0)) + ds('va') + ex[12:16]
        seq += w(2) + qk(self.m0(sn, km, pn, 0)) + X(3) + ex[16:20]
        seq += qk(self.m0(sn, km, pn, 1)) + ds('km') + ex[20:24]
        seq += w(0) + pv(self.smf(pp, 0, V_VB, sp, 1)) + X(4) + ex[24:28]
        seq += pv(self.smf(pp, 1, V_VB, sp, 1)) + ds('vb') + ex[28:32] + X(5)
        self.emit_items(seq)

    def prologue(self):
        c = self.cfg
        e = self.e
        scale = math.log2(math.e) / math.sqrt(20.0)
        e(f"s_cmp_ge_u32 s2, 256",
          f"s_cbranch_scc1 L_end",
          f"s_load_dwordx8 s[4:11], s[0:1], 0")
        self.stamp(0)
        e(f"v_lshrrev_b32 v1, 6, v0",
          f"v_and_b32 v2, 63, v0",
          f"v_readfirstlane_b32 s{S_W}, v1",
          f"s_and_b32 s{S_T0}, s2, 7",
          f"s_lshl_b32 s{S_T0}, s{S_T0}, 3",
          f"s_lshr_b32 s{S_T1}, s2, 5",
          f"s_add_u32 s{S_T0}, s{S_T0}, s{S_T1}",
          f"s_mul_i32 s{S_HB}, s{S_T0}, {HEAD_BYTES}",
          f"s_bfe_u32 s{S_T0}, s2, 0x20003",
          f"s_mul_i32 s{S_T0}, s{S_T0}, 20480",
          f"v_and_b32 v3, 31, v0",
          f"v_mul_u32_u24 v3, 40, v3",
          f"v_bfe_u32 v4, v0, 5, 1",
          f"v_lshl_add_u32 v{V_ROW}, v4, 4, v3",
          f"v_mul_u32_u24 v{V_ROWL}, 40, v2",
          f"v_lshlrev_b32 v{V_DMA}, 4, v2",
          f"s_and_b32 s{S_T1}, s{S_W}, 3",
          f"s_lshr_b32 s{S_T2}, s{S_W}, 2",
          f"s_mul_i32 s{S_T3}, s{S_T1}, 5120",
          f"s_add_u32 s{S_T0}, s{S_T0}, s{S_T3}",
          f"s_add_u32 s{S_T0}, s{S_T0}, s{S_HB}",
          f"s_mul_i32 s{S_T3}, s{S_T2}, 2560",
          f"s_add_u32 s{S_Q0}, s{S_T0}, s{S_T3}",
          f"s_sub_u32 s{S_Q1}, s{S_T0}, s{S_T3}",
          f"s_add_u32 s{S_Q1}, s{S_Q1}, 2560",
          f"s_mul_i32 s{S_K0}, s{S_T2}, {HALF_BYTES}",
          f"s_add_u32 s{S_K0}, s{S_K0}, s{S_HB}",
          f"s_and_b32 s{S_T0}, s{S_T1}, 1",
          f"s_mul_i32 s{S_DOFF}, s{S_T0}, {HALF_BYTES}",
          f"s_lshl_b32 s{S_T3}, s{S_T2}, 10",
          f"s_add_u32 s{S_DOFF}, s{S_DOFF}, s{S_T3}",
          f"s_mul_i32 s{S_T0}, s{S_T0}, {L_K[1]-L_K[0]}",
          f"s_add_u32 s{S_T0}, s{S_T0}, s{S_T3}",
          f"s_add_u32 s{S_T0}, s{S_T0}, {L_K[0]}",
          f"s_add_u32 s{S_T3}, s{S_DOFF}, {L_V[0]}",
          f"s_add_u32 s{S_DOFF}, s{S_DOFF}, s{S_HB}",
          f"s_mov_b32 s{S_Q+2}, {TOTAL_BYTES}",
          f"s_mov_b32 s{S_Q+3}, 0x20000",
          f"s_mov_b32 s{S_K+2}, {TOTAL_BYTES}",
          f"s_mov_b32 s{S_K+3}, 0x20000",
          f"s_mov_b32 s{S_D+2}, {TOTAL_BYTES}",
          f"s_mov_b32 s{S_D+3}, 0x20000",
          f"s_cmp_ge_u32 s{S_T1}, 2",
          f"s_cselect_b32 m0, s{S_T3}, s{S_T0}",
          f"s_waitcnt lgkmcnt(0)",
          f"s_mov_b32 s{S_Q}, s4",
          f"s_mov_b32 s{S_Q+1}, s5",
          f"s_mov_b32 s{S_K}, s6",
          f"s_mov_b32 s{S_K+1}, s7",
          f"s_cselect_b32 s{S_D}, s8, s6",
          f"s_cselect_b32 s{S_D+1}, s9, s7",
          f"s_cbranch_scc0 L_skip_r0",
          f"buffer_load_dwordx4 v{V_DMA}, {sr(S_D,4)}, s{S_DOFF} offen lds",
          f"L_skip_r0:")
        vm = self.vmem
        vm(f"buffer_load_dwordx2 {vr(V_QT,2)}, v{V_ROWL}, {sr(S_Q,4)}, s{S_Q0} offen offset:32", "qt0")
        vm(f"buffer_load_dwordx2 {vr(V_KT,2)}, v{V_ROW}, {sr(S_K,4)}, s{S_K0} offen offset:32", "k0t")
        vm(f"buffer_load_dwordx4 {vr(V_Q,4)}, v{V_ROW}, {sr(S_Q,4)}, s{S_Q0} offen", "q0a")
        vm(f"buffer_load_dwordx4 {vr(V_Q+4,4)}, v{V_ROW}, {sr(S_Q,4)}, s{S_Q0} offen offset:1280", "q0b")
        vm(f"buffer_load_dwordx4 {vr(V_KM,4)}, v{V_ROW}, {sr(S_K,4)}, s{S_K0} offen", "k0m")
        vm(f"buffer_load_dwordx2 {vr(V_QT+2,2)}, v{V_ROWL}, {sr(S_Q,4)}, s{S_Q1} offen offset:32", "qt1")
        vm(f"buffer_load_dwordx4 {vr(V_Q+8,4)}, v{V_ROW}, {sr(S_Q,4)}, s{S_Q1} offen", "q1a")
        vm(f"buffer_load_dwordx4 {vr(V_Q+12,4)}, v{V_ROW}, {sr(S_Q,4)}, s{S_Q1} offen offset:1280", "q1b")
        vm(f"buffer_load_dwordx2 {vr(V_K1T,2)}, v{V_ROW}, {sr(S_K,4)}, s{S_K0} offen offset:{1280+32}", "k1t")
        vm(f"buffer_load_dwordx4 {vr(V_K1M,4)}, v{V_ROW}, {sr(S_K,4)}, s{S_K0} offen offset:1280", "k1m")
        for n in range(1, c.p0 + 1):
            self.emit_items(self.dma_round(n))
        e(f"s_mov_b32 s{S_C}, 0x{f32bits(scale):08x}",
          f"s_mov_b32 s{S_MSK}, 0xffff0000",
          f"s_movk_i32 s{S_INC}, 3840",
          f"s_mov_b32 s{S_V}, s8", f"s_mov_b32 s{S_V+1}, s9", f"s_mov_b32 s{S_V+2}, {TOTAL_BYTES}", f"s_mov_b32 s{S_V+3}, 0x20000",
          f"s_mov_b32 s{S_O}, s10", f"s_mov_b32 s{S_O+1}, s11", f"s_mov_b32 s{S_O+2}, {TOTAL_BYTES}", f"s_mov_b32 s{S_O+3}, 0x20000",
          f"v_mov_b32 v6, 0", f"v_mov_b32 v7, 0",
          f"v_and_b32 v1, 1, v0",
          f"v_cmp_eq_u32 vcc, 0, v1",
          f"v_mfma_f32_32x32x4_2b_bf16 {vr(V_O,32)}, v[6:7], v[6:7], 0",
          f"v_mfma_f32_32x32x4_2b_bf16 {vr(V_O+32,32)}, v[6:7], v[6:7], 0",
          f"v_mov_b32 v4, 0x3f80",
          f"v_lshlrev_b32 v1, 3, v0",
          f"v_mov_b32 v5, 0",
          f"v_cndmask_b32 v4, 0, v4, vcc",
          f"v_mov_b32 v{V_IDX}, 0xdddd",
          f"ds_write_b64 v1, v[4:5]",
          f"s_mul_i32 s{S_T0}, s{S_T2}, {L_K[1]-L_K[0]}",
          f"s_add_u32 s{S_T0}, s{S_T0}, {L_K[0]}",
          f"v_add_u32 v{V_AK}, s{S_T0}, v{V_ROW}",
          f"s_mul_i32 s{S_T0}, s{S_T2}, {HALF_BYTES}",
          f"s_add_u32 s{S_T0}, s{S_T0}, {L_V[0]-1280}",
          f"v_bfe_u32 v1, v0, 2, 2",
          f"v_bfe_u32 v3, v0, 5, 1",
          f"v_lshl_add_u32 v1, v3, 3, v1",
          f"v_mul_u32_u24 v1, 40, v1",
          f"v_and_b32 v2, 19, v0",
          f"v_bfe_u32 v4, v0, 4, 1",
          f"v_and_b32 v5, 3, v0",
          f"v_lshlrev_b32 v4, 5, v4",
          f"v_lshl_add_u32 v4, v5, 3, v4",
          f"v_add3_u32 v1, v1, v4, s{S_T0}",
          f"v_lshlrev_b32 v3, 6, v3",
          f"v_lshrrev_b32 v5, 1, v5",
          f"v_lshl_add_u32 v3, v5, 3, v3",
          f"v_add_u32 v3, 160, v3",
          f"v_cmp_lt_u32 vcc, 16, v2",
          f"v_mov_b32 v4, s{S_INC}",
          f"s_nop 0",
          f"v_cndmask_b32 v{V_AV}, v1, v3, vcc",
          f"v_cndmask_b32 v{V_INC}, v4, 0, vcc")
        self.stamp(1)
        s0 = V_S
        e(self.vmwait("qt0"))
        e(self.qconv_many([V_QT, V_QT+1]))
        e(self.vmwait("k0t"))
        e("s_nop 0")
        e(self.m2b(s0, V_KT, 0))
        e(self.vmwait("q0b"))
        e(self.qconv_many(list(range(V_Q, V_Q+8))))
        e(self.vmwait("k0m"))
        e("s_nop 0")
        e(self.m0(s0, V_KM, 0, 0), self.m0(s0, V_KM, 0, 1))
        e(self.vmwait("q1b"))
        e(self.qconv_many([V_QT+2, V_QT+3] + list(range(V_Q+8, V_Q+16))))
        e("s_nop 1")
        self.stamp(2)

    def need_round(self, last_even_slot):
        t = last_even_slot // 2
        need = min(1280*(t+2), 40960)
        return (need + 2047)//2048 - 1

    def main(self):
        c = self.cfg
        e = self.e
        NP = 9
        rounds = list(range(c.p0 + 1, 20))
        pos_cycle = c.dma_pos
        ext = {j: {} for j in range(NP)}
        j = c.dma_start
        k = 0
        while rounds:
            n = rounds.pop(0)
            p = pos_cycle[k % len(pos_cycle)]
            ext[j].setdefault(p, []).extend(self.dma_round(n))
            k += 1
            if k % len(pos_cycle) == 0: j += 1
            assert j < NP or not rounds, "DMA rounds do not fit in the peeled slots"
        prio = lambda j: (c.prio[j % len(c.prio)] if c.prio else None)
        bars = sorted(c.bars)
        def barrier_items(nxt):
            if nxt is None: r = 19
            else:
                le = nxt - 1 if (nxt - 1) % 2 == 0 else nxt - 2
                r = self.need_round(le)
            return [lambda r=r: self.vmwait(f"r{r}"), "s_barrier"]
        nxt_of = {}
        allb = [0] + bars + ([c.loopbar_slot] if c.loopbar_slot else [])
        for a, b in zip(allb, allb[1:] + [None]): nxt_of[a] = b
        for j in range(NP):
            x = ext[j]
            if j in bars:
                x.setdefault(0, [])
                x[0] = barrier_items(nxt_of[j]) + x[0]
            if j == 0:
                tail = ["s_waitcnt lgkmcnt(0)"] + barrier_items(nxt_of[0]) + [
                    f"ds_read_b64_tr_b16 {vr(V_VA,2)}, v{V_AV} offset:1280", f"ds_read_b64_tr_b16 {vr(V_VA+2,2)}, v{V_AV} offset:{1280+160}",
                    f"ds_read_b64_tr_b16 {vr(V_VB,2)}, v{V_AV} offset:{1280+640}", f"ds_read_b64_tr_b16 {vr(V_VB+2,2)}, v{V_AV} offset:{1280+800}"]
                x.setdefault(5, []); x[5] = x[5] + tail
                self.slot(0, do_pv=False, kload=False, vload=False, extras=x, prio=prio(0))
                self.stamp(3)
            elif j == 1:
                x.setdefault(0, []); x[0] = [lambda: self.vmwait("k1m")] + x[0]
                self.slot(1, km=V_K1M, kt=V_K1T, waits={3: 2, 0: 0}, extras=x, prio=prio(1))
            elif j == 2:
                x.setdefault(5, []); x[5] = x[5] + [f"v_add_u32 v{V_AV}, v{V_INC}, v{V_AV}"]
                self.slot(2, km=V_K1M, kt=V_K1T, koff=2*1280, voff=2560, extras=x, prio=prio(2))
            else:
                t = j // 2
                if j == 8:
                    x.setdefault(5, []); x[5] = x[5] + [f"v_add_u32 v{V_AV}, v{V_INC}, v{V_AV}"]
                self.slot(j, koff=(t+1)*1280, voff=(t-2)*1280, extras=x, prio=prio(j))
        self.stamp(4)
        if 9 in bars:
            self.emit_items(barrier_items(nxt_of[9]))
        e(f"s_mov_b32 s{S_CNT}, 9")
        if c.align: e(f".p2align {c.align}")
        e("L_loop:")
        self.loop_start = len(self.L)
        for jj in range(6):
            j = 9 + jj
            t = j // 2
            x = {}
            if jj == 0 and c.loopbar_slot:
                it = (c.loopbar_slot - 9)//6
                x[0] = [f"s_cmp_eq_u32 s{S_CNT}, {9 - it}", "s_cbranch_scc1 L_bar", "L_bar_ret:"]
            if jj == 5:
                x[4] = [f"s_sub_u32 s{S_CNT}, s{S_CNT}, 1"]
                x[5] = [f"v_add_u32 v{V_AK}, s{S_INC}, v{V_AK}", f"v_add_u32 v{V_AV}, v{V_INC}, v{V_AV}",
                        f"s_cmp_lg_u32 s{S_CNT}, 0", "s_cbranch_scc1 L_loop"]
            self.slot(j, koff=(t+1)*1280, voff=(t-5)*1280, extras=x, prio=prio(j))
        self.loop_end = len(self.L)
        self.slot(63, do_qk=False, prio=prio(63), waits={3: 3, 0: 0})
        sp = V_S + 32*(63 % 3)
        e("s_nop 0")
        e(self.smf(1, 0, V_VA, sp, 0), self.smf(1, 1, V_VA, sp, 0), self.smf(1, 0, V_VB, sp, 1), self.smf(1, 1, V_VB, sp, 1))
        self.stamp(5)

    def epilogue(self):
        c = self.cfg
        e = self.e
        R = V_S
        A = V_T
        e(f"s_mul_i32 s{S_T0}, s{S_W}, 6144",
          f"s_xor_b32 s{S_T1}, s{S_W}, 4",
          f"s_mul_i32 s{S_T1}, s{S_T1}, 6144",
          f"s_add_u32 s{S_T0}, s{S_T0}, 4096",
          f"s_add_u32 s{S_T1}, s{S_T1}, 4096",
          f"v_add_u32 v{A}, s{S_T0}, v{V_DMA}",
          f"v_add_u32 v{A+1}, s{S_T1}, v{V_DMA}")
        e("s_barrier")
        e("s_nop 4")
        for i in range(2):
            for k in range(3):
                e(f"ds_write_b128 v{A}, {vr(V_O+32+16*i+4*k,4)} offset:{(3*i+k)*1024}")
        e("s_waitcnt lgkmcnt(0)", "s_barrier")
        for i in range(2):
            for k in range(3):
                e(f"ds_read_b128 {vr(R+12*i+4*k,4)}, v{A+1} offset:{(3*i+k)*1024}")
        for i in range(2):
            e(f"s_waitcnt lgkmcnt({3*(1-i)})")
            for k in range(12):
                e(f"v_add_f32 v{V_O+16*i+k}, v{V_O+16*i+k}, v{R+12*i+k}")
        self.stamp(6)
        e("L_final:")
        LA, LB, RA, RB, CK = V_T+2, V_T+3, V_T+4, V_T+5, V_T+6
        e(f"v_mov_b32 v{LA}, v{V_O+8}", f"v_mov_b32 v{LB}, v{V_O+16+8}", f"v_mov_b32 v{CK}, 0", "s_nop 0",
          f"v_permlane32_swap_b32 v{V_O+8}, v{LA}", f"v_permlane32_swap_b32 v{V_O+16+8}, v{LB}",
          f"s_mov_b32 s{S_T0}, 0x{f32bits(2.0**100):08x}",
          f"v_rcp_f32 v{RA}, v{LA}", f"v_rcp_f32 v{RB}, v{LB}",
          f"v_min_f32 v{V_T}, v{LA}, v{LB}", f"v_max_f32 v{V_T+1}, v{LA}, v{LB}")
        P = V_S + 32
        for i, r in ((0, RA), (1, RB)):
            for k in range(12):
                e(f"v_mul_f32 v{V_O+16*i+k}, v{V_O+16*i+k}, v{r}")
            for k in range(6):
                e(f"v_cvt_pk_bf16_f32 v{P+6*i+k}, v{V_O+16*i+2*k}, v{V_O+16*i+2*k+1}")
        e(f"v_cmp_le_f32 vcc, 1.0, v{V_T}",
          f"v_cmp_ge_f32 {sr(S_T2,2)}, s{S_T0}, v{V_T+1}",
          f"v_cmp_o_f32 {sr(S_STAMP-2,2)}, v{LA}, v{LB}")
        for i in range(2):
            e(f"v_permlane32_swap_b32 v{P+6*i}, v{P+6*i+2}", f"v_permlane32_swap_b32 v{P+6*i+1}, v{P+6*i+3}")
        e(f"v_permlane32_swap_b32 v{P+4}, v{P+10}", f"v_permlane32_swap_b32 v{P+5}, v{P+11}")
        e(f"s_and_b64 vcc, vcc, {sr(S_T2,2)}", f"s_and_b64 {sr(S_T2,2)}, vcc, {sr(S_STAMP-2,2)}")
        for k in list(range(6)) + list(range(6, 10)):
            e(f"v_dot2_f32_bf16 v{CK}, v{P+k}, 0, v{CK}")
        e("s_nop 2",
          f"v_cmp_o_f32 vcc, v{CK}, v{CK}",
          f"s_nop 1",
          f"s_and_b64 vcc, vcc, {sr(S_T2,2)}",
          f"s_cmp_eq_u64 vcc, -1" if False else f"s_andn2_b64 vcc, exec, vcc",
          f"s_cbranch_scc1 L_slow",
          "L_store:")
        e(f"buffer_store_dwordx4 {vr(P,4)}, v{V_ROW}, {sr(S_O,4)}, s{S_Q0} offen",
          f"buffer_store_dwordx4 {vr(P+6,4)}, v{V_ROW}, {sr(S_O,4)}, s{S_Q0} offen offset:1280",
          f"buffer_store_dwordx2 {vr(P+4,2)}, v{V_ROWL}, {sr(S_O,4)}, s{S_Q0} offen offset:32")
        if c.stamps:
            self.stamp(7)
            e("s_waitcnt vmcnt(0)")
            self.stamp(8)
            e("s_load_dwordx2 s[4:5], s[0:1], 40", "s_waitcnt lgkmcnt(0)",
              "s_mov_b32 s6, 0x1000000", "s_mov_b32 s7, 0x20000",
              f"s_lshl_b32 s8, s2, 3", f"s_add_u32 s8, s8, s{S_W}", "s_lshl_b32 s8, s8, 7", "v_mov_b32 v1, 0")
            for k in range(9):
                e(f"v_mov_b32 v2, s{S_STAMP+2*k}", f"v_mov_b32 v3, s{S_STAMP+2*k+1}", f"buffer_store_dwordx2 v[2:3], v1, s[4:7], s8 offen offset:{8*k}", "s_nop 1")
            e("s_memrealtime s[10:11]", "s_waitcnt lgkmcnt(0)", "v_mov_b32 v2, s10", "v_mov_b32 v3, s11", f"buffer_store_dwordx2 v[2:3], v1, s[4:7], s8 offen offset:72")
        e("L_end:", "s_endpgm")
        if c.loopbar_slot:
            e("L_bar:", "s_waitcnt vmcnt(0)", "s_barrier", "s_branch L_bar_ret")

    def slow(self):
        e = self.e
        S0 = V_S; BI = V_S + 32; MA, MB = V_T, V_T+1
        GV = V_T + 2
        SOFF = S_T0
        e("L_slow:",
          f"s_cmp_eq_u32 s{S_CNT}, 77", "s_cbranch_scc1 L_store",
          f"s_mov_b32 s{S_CNT}, 77",
          f"v_mov_b32 v{MA}, 0xff800000", f"v_mov_b32 v{MB}, 0xff800000",
          f"s_mov_b32 s{SOFF}, s{S_HB}", f"s_add_u32 s{S_T1}, s{S_HB}, {HEAD_BYTES}",
          "L_slow1:",
          f"buffer_load_dwordx2 {vr(V_KT,2)}, v{V_ROW}, {sr(S_K,4)}, s{SOFF} offen offset:32",
          f"buffer_load_dwordx4 {vr(V_KM,4)}, v{V_ROW}, {sr(S_K,4)}, s{SOFF} offen",
          "s_waitcnt vmcnt(0)",
          self.m2b(S0, V_KT, 0), "s_nop 15", "s_nop 1",
          self.m0(S0, V_KM, 0, 0), self.m0(S0, V_KM, 0, 1), "s_nop 11")
        for k in range(8):
            e(f"v_max3_f32 v{MA}, v{S0+2*k}, v{S0+2*k+1}, v{MA}")
        for k in range(8):
            e(f"v_max3_f32 v{MB}, v{S0+16+2*k}, v{S0+16+2*k+1}, v{MB}")
        e(f"s_add_u32 s{SOFF}, s{SOFF}, 1280", f"s_cmp_lt_u32 s{SOFF}, s{S_T1}", "s_cbranch_scc1 L_slow1")
        e(f"v_mov_b32 v{GV}, v{MA}", f"v_mov_b32 v{GV+1}, v{MB}", "s_nop 1",
          f"v_permlane32_swap_b32 v{MA}, v{GV}", f"v_permlane32_swap_b32 v{MB}, v{GV+1}", "s_nop 1",
          f"v_max_f32 v{MA}, v{MA}, v{GV}", f"v_max_f32 v{MB}, v{MB}, v{GV+1}")
        for k in range(16):
            e(f"v_sub_f32 v{BI+k}, 0, v{MA}", f"v_sub_f32 v{BI+16+k}, 0, v{MB}")
        for k in range(32):
            e(f"v_mov_b32 v{V_O+k}, 0")
        e(f"v_and_b32 v{GV+1}, 31, v0", f"v_bfe_u32 v{GV}, v0, 5, 1", f"v_mul_u32_u24 v{GV}, 320, v{GV}",
          f"v_lshl_add_u32 v{GV}, v{GV+1}, 1, v{GV}",
          f"v_cmp_eq_u32 vcc, 20, v{GV+1}", f"v_mov_b32 v{GV+2}, 0x3f803f80", "s_nop 0",
          f"v_cndmask_b32 v{GV+2}, 0, v{GV+2}, vcc")
        for k in range(8):
            e(f"v_mov_b32 v{V_VA+k}, v{GV+2}")
        e(f"v_cmp_gt_u32 {sr(S_T2,2)}, 20, v{GV+1}",
          f"s_mov_b32 s{SOFF}, s{S_HB}",
          "L_slow2:",
          f"buffer_load_dwordx2 {vr(V_KT,2)}, v{V_ROW}, {sr(S_K,4)}, s{SOFF} offen offset:32",
          f"buffer_load_dwordx4 {vr(V_KM,4)}, v{V_ROW}, {sr(S_K,4)}, s{SOFF} offen",
          f"s_mov_b64 exec, {sr(S_T2,2)}")
        G = V_S + 64
        for s in range(2):
            for jj in range(8):
                e(f"buffer_load_ushort v{G+8*s+jj}, v{GV}, {sr(S_V,4)}, s{SOFF} offen offset:{640*s+40*jj}")
        e("s_waitcnt vmcnt(0)")
        for k in range(8):
            e(f"v_lshl_or_b32 v{V_VA+k}, v{G+2*k+1}, 16, v{G+2*k}")
        e("s_mov_b64 exec, -1", "s_nop 3",
          self.m2b(S0, V_KT, 0, c=vr(BI, 32)), "s_nop 15", "s_nop 1",
          self.m0(S0, V_KM, 0, 0), self.m0(S0, V_KM, 0, 1), "s_nop 11")
        for k in range(32):
            e(f"v_exp_f32 v{S0+k}, v{S0+k}")
        e("s_nop 1", self.smf(0, 0, V_VA, S0, 0), self.smf(0, 1, V_VA, S0, 0), self.smf(0, 0, V_VB, S0, 1), self.smf(0, 1, V_VB, S0, 1),
          f"s_add_u32 s{SOFF}, s{SOFF}, 1280", f"s_cmp_lt_u32 s{SOFF}, s{S_T1}", "s_cbranch_scc1 L_slow2",
          "s_nop 11", "s_branch L_final")

    def build(self):
        self.prologue(); self.main(); self.epilogue(); self.slow()
        hdr = open("cdna_kernels/%s.s.ref" % NAME).read().split("; @launch")[0]
        txt = hdr + f"; @launch grid=(256,1,1) block=(512,1,1) lds={LDS_BYTES}\n"
        txt += DOC
        txt += f'.amdgcn_target "amdgcn-amd-amdhsa--gfx950"\n.text\n.globl {NAME}_kernel\n.p2align 8\n.type {NAME}_kernel,@function\n{NAME}_kernel:\n'
        for x in self.L:
            txt += (x if x.endswith(":") or x.startswith(".") else "    " + x) + "\n"
        nv = 256 if self.cfg.maxv else (V_END + 7)//8*8
        txt += f""".section .rodata,"a"
.p2align 6
.amdhsa_kernel {NAME}_kernel
  .amdhsa_next_free_vgpr {nv}
  .amdhsa_next_free_sgpr 80
  .amdhsa_accum_offset {nv}
  .amdhsa_group_segment_fixed_size 0
  .amdhsa_kernarg_size 48
  .amdhsa_user_sgpr_count 2
  .amdhsa_user_sgpr_kernarg_segment_ptr 1
  .amdhsa_system_sgpr_workgroup_id_x 1
.end_amdhsa_kernel
"""
        return txt

DOC = """; Fused attention, one workgroup (8 waves) per (head, 512-query quarter).
"""

def regs_of(tok):
    m = re.fullmatch(r"v\[(\d+):(\d+)\]", tok)
    if m: return set(range(int(m.group(1)), int(m.group(2))+1))
    m = re.fullmatch(r"v(\d+)", tok)
    if m: return {int(m.group(1))}
    return set()
def parse(ins):
    p = ins.split(None, 1)
    op = p[0]; ops = [x.strip() for x in p[1].split(",")] if len(p) > 1 else []
    if ops: ops[-1] = ops[-1].split()[0] if ops[-1] else ops[-1]
    return op, ops
def states(op, ops):
    if op == "s_nop": return int(ops[0]) + 1
    return 1
TRANS = ("v_exp_f32", "v_rcp_f32")
def check(seq, label=""):
    errs = []
    P = [parse(x) for x in seq]
    for i, (op, ops) in enumerate(P):
        is_m = op.startswith("v_mfma") or op.startswith("v_smfmac")
        is_valu = op.startswith("v_") and not is_m
        if not (is_m or is_valu): continue
        D = regs_of(ops[0])
        if op.startswith("v_permlane32_swap"): D |= regs_of(ops[1])
        passes = 16 if "_2b_" in op else 8
        C = (D if op.startswith("v_smfmac") else regs_of(ops[3])) if is_m else set()
        dist = 0
        for k in range(i+1, min(i+40, len(P))):
            op2, ops2 = P[k]
            m2 = op2.startswith("v_mfma") or op2.startswith("v_smfmac")
            valu2 = op2.startswith("v_") and not m2
            mem2 = op2.startswith("ds_") or op2.startswith("buffer_")
            allr = [regs_of(x) for x in ops2]
            need = 0
            if is_m:
                if m2:
                    D2 = allr[0]; A2 = allr[1] | allr[2]
                    C2 = D2 if op2.startswith("v_smfmac") else allr[3]
                    if op2.startswith("v_smfmac"): A2 |= allr[3]
                    p2 = 16 if "_2b_" in op2 else 8
                    if A2 & D: need = max(need, {8: 12, 16: 20}[passes])
                    if C2 & D and not (C2 == D and p2 == passes): need = max(need, {8: 10, 16: 18}[passes])
                    if (D2 & D) and not (C2 & D) : need = max(need, 0)
                elif valu2 or mem2:
                    touched = set().union(*allr) if allr else set()
                    if touched & D: need = max(need, {8: 12, 16: 20}[passes])
                    if valu2 and (allr[0] & C): need = max(need, {8: 7, 16: 15}[passes])
            else:
                if m2:
                    rd = allr[1] | allr[2] | allr[3] | (allr[0] if op2.startswith("v_smfmac") else set())
                    if rd & D: need = 2
                elif valu2:
                    rd = set().union(*allr[1:]) if len(allr) > 1 else set()
                    if op2.startswith("v_permlane"): rd |= allr[0]
                    if op2.startswith(("v_fmac", "v_dot2c")): rd |= allr[0]
                    if rd & D:
                        if op in TRANS and op2 not in TRANS: need = max(need, 1)
                        if op2.startswith("v_permlane"): need = max(need, 2)
                        if op2.startswith(("v_readfirstlane", "v_readlane")): need = max(need, 1)
                        if op.startswith("v_dot2") and not (op2 == op and (allr[3] & D) and not ((allr[1] | allr[2]) & D)): need = max(need, 3)
                if op.startswith(("v_cmp", "v_readfirstlane")) and valu2:
                    dst = ops[0]
                    if any(dst == x for x in ops2[1:]): need = max(need, 2)
                if op.startswith(("v_cmp", "v_readfirstlane")) and op2.startswith("buffer_"):
                    if any(ops[0] == x for x in ops2): need = max(need, 5)
            if need > dist:
                errs.append(f"{label}: [{i}] {seq[i]}  ->  [{k}] {seq[k]} : need {need} have {dist}")
            dist += states(op2, ops2)
            if op2 in ("s_branch", "s_endpgm"): break
    for i, (op, ops) in enumerate(P):
        if op in ("buffer_store_dwordx4", "ds_write_b128"):
            d = regs_of(ops[0] if op.startswith("buffer") else ops[1])
            for k in (i+1, i+2):
                if k < len(P) and P[k][0].startswith("v_") and regs_of(P[k][1][0]) & d: errs.append(f"{label}: store WAR {seq[i]} -> {seq[k]}")
        if op.startswith("s_") and ops and ops[0] == "m0" and i+1 < len(P) and P[i+1][0].startswith("buffer_load") and "lds" in seq[i+1]:
            errs.append(f"{label}: m0 hazard {seq[i]} -> {seq[i+1]}")
    return errs

def main():
    ap = argparse.ArgumentParser()
    ap.add_argument("-o", default="cdna_kernels/%s.s" % NAME)
    ap.add_argument("--stamps", action="store_true")
    ap.add_argument("--p0", type=int, default=3)
    ap.add_argument("--dma_start", type=int, default=0)
    ap.add_argument("--dma_pos", default="1,4")
    ap.add_argument("--bars", default="9")
    ap.add_argument("--loopbar_slot", type=int, default=27)
    ap.add_argument("--prio", default="2,1,0")
    ap.add_argument("--align", type=int, default=6)
    ap.add_argument("--maxv", action="store_true")
    c = ap.parse_args()
    c.dma_pos = [int(x) for x in c.dma_pos.split(",")]
    c.bars = [int(x) for x in c.bars.split(",")] if c.bars else []
    c.prio = [int(x) for x in c.prio.split(",")] if c.prio else []
    g = Gen(c)
    txt = g.build()
    code = lambda L: [x for x in L if not (x.endswith(":") or x.startswith("."))]
    errs = check(code(g.L), "linear")
    errs += check(code(g.L[g.loop_start:g.loop_end] + g.L[g.loop_start:g.loop_end]), "loop")
    for x in errs: print("HAZARD", x)
    open(c.o, "w").write(txt)
    print("wrote", c.o, "instrs", len(code(g.L)), "vgprs", V_END)
main()
```

```python
import sys, math, struct, re, argparse

NAME = "standalone__fused_io_aware_attn__prompt"
def f32bits(x): return struct.unpack("<I", struct.pack("<f", x))[0]
def vr(b, n=1): return f"v[{b}:{b+n-1}]" if n > 1 else f"v{b}"
def sr(b, n=1): return f"s[{b}:{b+n-1}]" if n > 1 else f"s{b}"

V_TID = 0
V_T = 1
V_O = 8
V_S = V_O + 64
V_Q = V_S + 96
V_QT = V_Q + 16
V_KM = V_QT + 4
V_KT = V_KM + 4
V_VA = V_KT + 2
V_VB = V_VA + 4
V_IDX = V_VB + 4
V_AK = V_IDX + 1
V_AV = V_AK + 1
V_INC = V_AV + 1
V_ROW = V_INC + 1
V_ROWL = V_ROW + 1
V_DMA = V_ROWL + 1
V_L8 = V_DMA + 1
V_END = V_L8 + 1

S_Q, S_K, S_V, S_O, S_D = 12, 16, 20, 24, 28
S_W, S_HB, S_Q0, S_Q1, S_K0, S_DOFF, S_C, S_MSK, S_CNT, S_INC, S_T0, S_T1, S_T2, S_T3 = range(32, 46)
S_C2 = 72
S_STAMP = 48
TOTAL_BYTES = 2*32*2048*20*2
HEAD_BYTES = 2048*40
HALF_BYTES = 1024*40
L_ONES = 0
L_V = [4096, 122880]
L_K = [43008, 81920]
L_Q = 143360
LDS_BYTES = 163840

class Gen:
    def __init__(self, cfg):
        self.cfg = cfg
        self.L = []
        self.vm = []
    def e(self, *xs):
        for x in xs:
            if isinstance(x, (list, tuple)): self.e(*x)
            else: self.L.append(x)
    def vmem(self, ins, tag):
        self.e(ins); self.vm.append(tag)
    def vmwait(self, tag):
        i = max(k for k, t in enumerate(self.vm) if t == tag)
        n = len(self.vm) - 1 - i
        return f"s_waitcnt vmcnt({n})"
    def stamp(self, k, pro=False):
        if self.cfg.pst and k in (3, 4, 5, 6) and not pro: return
        if pro and not self.cfg.pst: return
        if self.cfg.stamps:
            self.e(f"s_memtime {sr(S_STAMP + 2*k, 2)}")

    def dma_round(self, n):
        out = []
        if n >= 2 and n % 2 == 0:
            out.append(f"s_add_u32 m0, m0, 4096")
            out.append(f"s_add_u32 s{S_DOFF}, s{S_DOFF}, 4096")
        off = (n & 1) * 2048
        out.append(("VM", f"buffer_load_dwordx4 v{V_DMA}, {sr(S_D,4)}, s{S_DOFF} offen" + (f" offset:{off}" if off else "") + " lds", f"r{n}"))
        return out
    def emit_items(self, items):
        for it in items:
            if isinstance(it, tuple) and it[0] == "VM": self.vmem(it[1], it[2])
            elif callable(it): self.e(it())
            else: self.e(it)

    def qconv(self, r, t0, t1):
        return [f"v_lshlrev_b32 v{t0}, 16, v{r}",
                f"v_and_b32 v{t1}, s{S_MSK}, v{r}",
                f"v_pk_mul_f32 {vr(t0,2)}, {vr(t0,2)}, {sr(S_C2,2)}",
                f"v_cvt_pk_bf16_f32 v{r}, v{t0}, v{t1}"]
    def qconv_many(self, regs):
        out = []
        for i in range(0, len(regs), 2):
            a = self.qconv(regs[i], V_KM, V_KM+1); b = self.qconv(regs[i+1], V_KM+2, V_KM+3)
            for x, y in zip(a, b): out += [x, y]
        return out

    def m2b(self, sbuf, kt, pair, c="0"):
        return f"v_mfma_f32_32x32x4_2b_bf16 {vr(sbuf,32)}, {vr(kt,2)}, {vr(V_QT+2*pair,2)}, {c} cbsz:1 abid:0"
    def m0(self, sbuf, km, pair, i):
        d = sbuf + 16*i
        return f"v_mfma_f32_32x32x16_bf16 {vr(d,16)}, {vr(km,4)}, {vr(V_Q+8*pair+4*i,4)}, {vr(d,16)}"
    def smf(self, pair, i, vreg, sbuf, half):
        return f"v_smfmac_f32_32x32x32_bf16 {vr(V_O+32*pair+16*i,16)}, {vr(vreg,4)}, {vr(sbuf+16*i+8*half,8)}, v{V_IDX}"

    def slot(self, j, km=V_KM, kt=V_KT, koff=None, voff=None, do_qk=True, do_pv=True, waits=True,
             extras=None, prio=None, kload=True, vload=True):
        extras = extras or {}
        sc = V_S + 32*(j % 3); sn = V_S + 32*((j+1) % 3); sp = V_S + 32*((j-1) % 3)
        pn = (j+1) & 1; pp = (j-1) & 1
        even = (j & 1) == 0
        ex = [f"v_exp_f32 v{sc+i}, v{sc+i}" for i in range(32)]
        def ds(kind):
            if not even: return []
            if kind == 'kt': return [f"ds_read_b64 {vr(V_KT,2)}, v{V_AK} offset:{koff+32}"] if kload else []
            if kind == 'km': return [f"ds_read_b64 {vr(V_KM,2)}, v{V_AK} offset:{koff}", f"ds_read_b64 {vr(V_KM+2,2)}, v{V_AK} offset:{koff+8}"] if kload else []
            if kind == 'va': return [f"ds_read_b64_tr_b16 {vr(V_VA,2)}, v{V_AV} offset:{voff}", f"ds_read_b64_tr_b16 {vr(V_VA+2,2)}, v{V_AV} offset:{voff+160}"] if vload else []
            if kind == 'vb': return [f"ds_read_b64_tr_b16 {vr(V_VB,2)}, v{V_AV} offset:{voff+640}", f"ds_read_b64_tr_b16 {vr(V_VB+2,2)}, v{V_AV} offset:{voff+800}"] if vload else []
        def w(n):
            if even or not waits: return []
            if isinstance(waits, dict): return [f"s_waitcnt lgkmcnt({waits[n]})"] if n in waits else []
            return [f"s_waitcnt lgkmcnt({n})"]
        X = lambda k: extras.get(k, [])
        qk = lambda x: [x] if do_qk else []
        pv = lambda x: [x] if do_pv else []
        seq = []
        if prio is not None: seq.append(f"s_setprio {prio}")
        seq += X(0) + w(6) + qk(self.m2b(sn, kt, pn)) + ds('kt') + ex[0:4] + X(1) + ex[4:8]
        seq += w(4) + pv(self.smf(pp, 0, V_VA, sp, 0)) + X(2) + ex[8:12]
        seq += pv(self.smf(pp, 1, V_VA, sp, 0)) + ds('va') + ex[12:16]
        seq += w(2) + qk(self.m0(sn, km, pn, 0)) + X(3) + ex[16:20]
        seq += qk(self.m0(sn, km, pn, 1)) + ds('km') + ex[20:24]
        seq += w(0) + pv(self.smf(pp, 0, V_VB, sp, 1)) + X(4) + ex[24:28]
        seq += pv(self.smf(pp, 1, V_VB, sp, 1)) + ds('vb') + ex[28:32] + X(5)
        self.emit_items(seq)

    def prologue(self):
        c = self.cfg
        e = self.e
        scale = math.log2(math.e) / math.sqrt(20.0)
        QL = V_S + 64
        e(f"s_cmp_ge_u32 s2, 256",
          f"s_cbranch_scc1 L_end",
          f"s_load_dwordx8 s[4:11], s[0:1], 0")
        self.stamp(0)
        if c.stamps: e("s_memrealtime s[70:71]")
        e(f"v_lshrrev_b32 v1, 6, v0",
          f"v_and_b32 v2, 63, v0",
          f"v_readfirstlane_b32 s{S_W}, v1",
          f"s_and_b32 s{S_T0}, s2, 7",
          f"s_lshl_b32 s{S_T0}, s{S_T0}, 3",
          f"s_lshr_b32 s{S_T1}, s2, 5",
          f"s_add_u32 s{S_T0}, s{S_T0}, s{S_T1}",
          f"s_mul_i32 s{S_HB}, s{S_T0}, {HEAD_BYTES}",
          f"s_bfe_u32 s{S_T0}, s2, 0x20003",
          f"s_mul_i32 s{S_Q0}, s{S_T0}, 20480",
          f"s_add_u32 s{S_Q0}, s{S_Q0}, s{S_HB}",
          f"v_lshlrev_b32 v{V_DMA}, 4, v2",
          f"v_lshlrev_b32 v{V_L8}, 3, v2",
          f"s_mul_i32 s{S_K0}, s{S_W}, 2560",
          f"s_add_u32 s{S_Q1}, s{S_Q0}, s{S_K0}",
          f"s_lshr_b32 s{S_T2}, s{S_W}, 2",
          f"s_and_b32 s{S_T0}, s{S_W}, 1",
          f"s_lshl_b32 s{S_T3}, s{S_T2}, 10",
          f"s_mul_i32 s{S_DOFF}, s{S_T0}, {HALF_BYTES}",
          f"s_add_u32 s{S_DOFF}, s{S_DOFF}, s{S_T3}",
          f"s_add_u32 s{S_DOFF}, s{S_DOFF}, s{S_HB}",
          f"s_mul_i32 s{S_T1}, s{S_T0}, {L_K[1]-L_K[0]}",
          f"s_add_u32 s{S_T1}, s{S_T1}, {L_K[0]}",
          f"s_mul_i32 s{S_T0}, s{S_T0}, {L_V[1]-L_V[0]}",
          f"s_add_u32 s{S_T0}, s{S_T0}, {L_V[0]}",
          f"s_mov_b32 s{S_Q+2}, {TOTAL_BYTES}",
          f"s_mov_b32 s{S_Q+3}, 0x20000",
          f"s_mov_b32 s{S_D+2}, {TOTAL_BYTES}",
          f"s_mov_b32 s{S_D+3}, 0x20000",
          f"s_bitcmp1_b32 s{S_W}, 1",
          f"s_cselect_b32 s{S_T0}, s{S_T0}, s{S_T1}",
          f"s_waitcnt lgkmcnt(0)",
          f"s_mov_b32 s{S_Q}, s4",
          f"s_mov_b32 s{S_Q+1}, s5",
          f"s_cselect_b32 s{S_D}, s8, s6",
          f"s_cselect_b32 s{S_D+1}, s9, s7",
          f"s_add_u32 m0, s{S_T0}, s{S_T3}")
        vm = self.vmem
        vm(f"buffer_load_dwordx4 {vr(QL,4)}, v{V_DMA}, {sr(S_Q,4)}, s{S_Q1} offen", "q0")
        vm(f"buffer_load_dwordx4 {vr(QL+4,4)}, v{V_DMA}, {sr(S_Q,4)}, s{S_Q1} offen offset:1024", "q1")
        vm(f"buffer_load_dwordx2 {vr(QL+8,2)}, v{V_L8}, {sr(S_Q,4)}, s{S_Q1} offen offset:2048", "q2")
        for n in range(0, c.pa + 1):
            self.emit_items(self.dma_round(n))
        e(f"s_mov_b32 s{S_C2}, 0x{f32bits(scale):08x}", f"s_mov_b32 s{S_C2+1}, 0x{f32bits(scale):08x}",
          f"s_mov_b32 s{S_MSK}, 0xffff0000",
          f"s_movk_i32 s{S_INC}, 3840",
          f"s_mov_b32 s{S_K}, s6", f"s_mov_b32 s{S_K+1}, s7", f"s_mov_b32 s{S_K+2}, {TOTAL_BYTES}", f"s_mov_b32 s{S_K+3}, 0x20000",
          f"s_mov_b32 s{S_V}, s8", f"s_mov_b32 s{S_V+1}, s9", f"s_mov_b32 s{S_V+2}, {TOTAL_BYTES}", f"s_mov_b32 s{S_V+3}, 0x20000",
          f"s_mov_b32 s{S_O}, s10", f"s_mov_b32 s{S_O+1}, s11", f"s_mov_b32 s{S_O+2}, {TOTAL_BYTES}", f"s_mov_b32 s{S_O+3}, 0x20000",
          f"v_mov_b32 v6, 0", f"v_mov_b32 v7, 0",
          f"v_and_b32 v1, 1, v0",
          f"v_cmp_eq_u32 vcc, 0, v1",
          f"v_mfma_f32_32x32x4_2b_bf16 {vr(V_O,32)}, v[6:7], v[6:7], 0",
          f"v_mfma_f32_32x32x4_2b_bf16 {vr(V_O+32,32)}, v[6:7], v[6:7], 0",
          f"v_mov_b32 v4, 0x3f80",
          f"v_lshlrev_b32 v1, 3, v0",
          f"v_mov_b32 v5, 0",
          f"v_cndmask_b32 v4, 0, v4, vcc",
          f"v_mov_b32 v{V_IDX}, 0xdddd",
          f"ds_write_b64 v1, v[4:5]",
          f"v_and_b32 v3, 31, v0",
          f"v_mul_u32_u24 v3, 40, v3",
          f"v_bfe_u32 v4, v0, 5, 1",
          f"v_lshl_add_u32 v{V_ROW}, v4, 4, v3",
          f"v_mul_u32_u24 v{V_ROWL}, 40, v2",
          f"s_mul_i32 s{S_T0}, s{S_T2}, {L_K[1]-L_K[0]}",
          f"s_add_u32 s{S_T0}, s{S_T0}, {L_K[0]}",
          f"v_add_u32 v{V_AK}, s{S_T0}, v{V_ROW}",
          f"s_mul_i32 s{S_T0}, s{S_T2}, {L_V[1]-L_V[0]}",
          f"s_add_u32 s{S_T0}, s{S_T0}, {L_V[0]-1280}",
          f"v_bfe_u32 v1, v0, 2, 2",
          f"v_lshl_add_u32 v1, v4, 3, v1",
          f"v_mul_u32_u24 v1, 40, v1",
          f"v_and_b32 v2, 19, v0",
          f"v_bfe_u32 v3, v0, 4, 1",
          f"v_and_b32 v5, 3, v0",
          f"v_lshlrev_b32 v3, 5, v3",
          f"v_lshl_add_u32 v3, v5, 3, v3",
          f"v_add3_u32 v1, v1, v3, s{S_T0}",
          f"v_lshlrev_b32 v4, 6, v4",
          f"v_lshrrev_b32 v5, 1, v5",
          f"v_lshl_add_u32 v4, v5, 3, v4",
          f"v_add_u32 v4, 160, v4",
          f"v_cmp_lt_u32 vcc, 16, v2",
          f"v_mov_b32 v3, s{S_INC}",
          f"s_add_u32 s{S_K0}, s{S_K0}, {L_Q}",
          f"v_cndmask_b32 v{V_AV}, v1, v4, vcc",
          f"v_cndmask_b32 v{V_INC}, v3, 0, vcc",
          f"v_add_u32 v5, s{S_K0}, v{V_DMA}",
          f"v_add_u32 v6, s{S_K0}, v{V_L8}",
          f"s_and_b32 s{S_T1}, s{S_W}, 3",
          f"s_mul_i32 s{S_T1}, s{S_T1}, 5120",
          f"s_mul_i32 s{S_T3}, s{S_T2}, 2560",
          f"s_add_u32 s{S_T0}, s{S_T1}, s{S_T3}",
          f"s_sub_u32 s{S_T1}, s{S_T1}, s{S_T3}",
          f"s_add_u32 s{S_T1}, s{S_T1}, {2560 + L_Q}",
          f"s_add_u32 s{S_Q1}, s{S_Q0}, s{S_T0}",
          f"s_add_u32 s{S_T0}, s{S_T0}, {L_Q}",
          f"v_add_u32 v{QL+10}, s{S_T1}, v{V_ROW}",
          f"v_add_u32 v{QL+11}, s{S_T1}, v{V_ROWL}",
          f"v_add_u32 v{QL+12}, s{S_T0}, v{V_ROW}",
          f"v_add_u32 v{QL+13}, s{S_T0}, v{V_ROWL}")
        if c.p0 > c.pa:
            if c.obar: e("s_barrier")
            for n in range(c.pa + 1, c.p0 + 1):
                self.emit_items(self.dma_round(n))
        self.stamp(1)
        e(self.vmwait("q0"))
        self.stamp(3, True)
        e(self.qconv_many(list(range(QL, QL+4))))
        e(f"ds_write_b128 v5, {vr(QL,4)}")
        e(self.vmwait("q1"))
        e(self.qconv_many(list(range(QL+4, QL+8))))
        e(f"ds_write_b128 v5, {vr(QL+4,4)} offset:1024")
        e(self.vmwait("q2"))
        self.stamp(4, True)
        e(self.qconv_many(list(range(QL+8, QL+10))))
        e(f"ds_write_b64 v6, {vr(QL+8,2)} offset:2048")
        bi = self.barrier_items(0)
        self.emit_items(["s_waitcnt lgkmcnt(0)"])
        self.stamp(5, True)
        self.emit_items(bi[:1])
        self.stamp(6, True)
        self.emit_items(bi[1:])
        self.stamp(2)
        s0 = V_S
        def rd4(dst, a, off): return [f"ds_read_b64 {vr(dst,2)}, v{a} offset:{off}", f"ds_read_b64 {vr(dst+2,2)}, v{a} offset:{off+8}"]
        e(f"ds_read_b64 {vr(V_QT,2)}, v{QL+11} offset:32",
          f"ds_read_b64 {vr(V_KT,2)}, v{V_AK} offset:32",
          rd4(V_KM, V_AK, 0), rd4(V_Q, QL+10, 0), rd4(V_Q+4, QL+10, 1280),
          f"ds_read_b64 {vr(V_QT+2,2)}, v{QL+13} offset:32",
          rd4(V_Q+8, QL+12, 0), rd4(V_Q+12, QL+12, 1280),
          "s_waitcnt lgkmcnt(11)",
          self.m2b(s0, V_KT, 0),
          "s_nop 15",
          "s_waitcnt lgkmcnt(5)", "s_nop 0",
          self.m0(s0, V_KM, 0, 0), self.m0(s0, V_KM, 0, 1),
          "s_nop 8", "s_waitcnt lgkmcnt(0)")

    def need_round(self, last_even_slot):
        t = last_even_slot // 2
        need = min(1280*(t+2), 40960)
        return (need + 2047)//2048 - 1

    def setup_sched(self):
        c = self.cfg
        bars = sorted(c.bars)
        allb = [0] + bars + ([c.loopbar_slot] if c.loopbar_slot else [])
        self.nxt_of = {}
        for a, b in zip(allb, allb[1:] + [None]): self.nxt_of[a] = b
    def barrier_items(self, slot):
        nxt = self.nxt_of[slot]
        if nxt is None: r = 19
        elif nxt == 1: r = 0
        else:
            le = nxt - 1 if (nxt - 1) % 2 == 0 else nxt - 2
            r = self.need_round(le)
        return [lambda r=r: self.vmwait(f"r{r}"), "s_barrier"]

    def main(self):
        c = self.cfg
        e = self.e
        NP = 9
        rounds = list(range(c.p0 + 1, 20))
        pos_cycle = c.dma_pos
        ext = {j: {} for j in range(NP)}
        j = c.dma_start
        k = 0
        bars = sorted(c.bars)
        while rounds:
            n = rounds.pop(0)
            p = pos_cycle[k % len(pos_cycle)]
            assert n < 10 or j >= min(b for b in bars if b >= 2), "round %d too early" % n
            ext[j].setdefault(p, []).extend(self.dma_round(n))
            k += 1
            if k % len(pos_cycle) == 0: j += 1
            assert j < NP or not rounds, "DMA rounds do not fit in the peeled slots"
        prio = lambda j: (c.prio[j % len(c.prio)] if c.prio else None)
        for j in range(NP):
            x = ext[j]
            if j in bars:
                x.setdefault(0, [])
                x[0] = self.barrier_items(j) + x[0]
            t = j // 2
            if j in (2, 8):
                x.setdefault(5, []); x[5] = x[5] + [f"v_add_u32 v{V_AV}, v{V_INC}, v{V_AV}"]
            kw = {}
            if 1 in bars and j == 0: kw = dict(kload=False)
            if 1 in bars and j == 1:
                x[0] = x[0] + [f"ds_read_b64 {vr(V_KT,2)}, v{V_AK} offset:{1280+32}", f"ds_read_b64 {vr(V_KM,2)}, v{V_AK} offset:1280", f"ds_read_b64 {vr(V_KM+2,2)}, v{V_AK} offset:{1280+8}"]
                kw = dict(waits={6: 2, 2: 0})
            self.slot(j, koff=(t+1)*1280, voff=((t+1) if t < 2 else (t-2))*1280, extras=x, prio=prio(j), do_pv=(j > 0), **kw)
            if j == 0: self.stamp(3)
        self.stamp(4)
        if 9 in bars:
            self.emit_items(self.barrier_items(9))
        e(f"s_mov_b32 s{S_CNT}, 9")
        if c.align: e(f".p2align {c.align}")
        e("L_loop:")
        self.loop_start = len(self.L)
        for jj in range(6):
            j = 9 + jj
            t = j // 2
            x = {}
            if jj == 0 and c.loopbar_slot:
                it = (c.loopbar_slot - 9)//6
                x[0] = [f"s_cmp_eq_u32 s{S_CNT}, {9 - it}", "s_cbranch_scc1 L_bar", "L_bar_ret:"]
            if jj == 5:
                x[4] = [f"s_sub_u32 s{S_CNT}, s{S_CNT}, 1"]
                x[5] = [f"v_add_u32 v{V_AK}, s{S_INC}, v{V_AK}", f"v_add_u32 v{V_AV}, v{V_INC}, v{V_AV}",
                        f"s_cmp_lg_u32 s{S_CNT}, 0", "s_cbranch_scc1 L_loop"]
            self.slot(j, koff=(t+1)*1280, voff=(t-5)*1280, extras=x, prio=prio(j))
        self.loop_end = len(self.L)
        sc = V_S + 32*(63 % 3); sp = V_S + 32*(62 % 3)
        ex = [f"v_exp_f32 v{sc+i}, v{sc+i}" for i in range(32)]
        A = V_T
        R = V_S + 32
        if c.prio: e(f"s_setprio {c.prio[63 % len(c.prio)]}")
        wr = [f"ds_write_b128 v{A}, {vr(V_O+16*i+4*k,4)} offset:{(3*i+k)*1024}" for i in range(2) for k in range(3)]
        rd = [f"ds_read_b128 {vr(R+12*i+4*k,4)}, v{A+1} offset:{(3*i+k)*1024}" for i in range(2) for k in (2, 0, 1)]
        e("s_waitcnt lgkmcnt(4)", self.smf(0, 0, V_VA, sp, 0),
          f"s_lshr_b32 s{S_T0}, s{S_W}, 1", f"s_mul_i32 s{S_T0}, s{S_T0}, 38912", f"s_and_b32 s{S_T1}, s{S_W}, 1",
          ex[0:3],
          "s_waitcnt lgkmcnt(0)", self.smf(0, 0, V_VB, sp, 1),
          f"s_mul_i32 s{S_T1}, s{S_T1}, 6144", f"s_add_u32 s{S_T0}, s{S_T0}, s{S_T1}", f"s_add_u32 s{S_T0}, s{S_T0}, 6144",
          ex[3:6], self.smf(0, 1, V_VA, sp, 0),
          f"s_add_u32 s{S_T1}, s{S_T0}, {2*38912}", f"s_sub_u32 s{S_T2}, s{S_T0}, {2*38912}",
          f"s_cmp_lt_u32 s{S_W}, 4", f"s_cselect_b32 s{S_T1}, s{S_T1}, s{S_T2}",
          ex[6:9], self.smf(0, 1, V_VB, sp, 1),
          f"v_add_u32 v{A}, s{S_T0}, v{V_DMA}",
          f"v_add_u32 v{A+1}, s{S_T1}, v{V_DMA}")
        if c.loopbar_slot < 27: e("s_barrier")
        e(ex[9:11], wr[0], ex[11:12], wr[1], self.smf(1, 0, V_VA, sc, 0), ex[12:13], wr[2], ex[13:17], wr[3], ex[17:18], wr[4], self.smf(1, 0, V_VB, sc, 1),
          ex[18:19], wr[5],
          f"v_bfe_u32 v{A+4}, v0, 5, 1", f"v_lshlrev_b32 v{A+4}, 3, v{A+4}", f"v_sub_u32 v{A+4}, v{V_ROW}, v{A+4}",
          f"v_add_u32 v{A+4}, s{S_T1}, v{A+4}", f"v_add_u32 v{A+5}, s{S_T1}, v{V_ROWL}", f"v_add_u32 v{A}, s{S_T1}, v{V_L8}",
          ex[19:26], self.smf(1, 1, V_VA, sc, 0),
          "s_waitcnt lgkmcnt(0)", "s_barrier", rd[0:3], ex[26:29], rd[3:6], ex[29:32], "s_nop 1", self.smf(1, 1, V_VB, sc, 1))
        self.stamp(5)

    def epilogue(self):
        c = self.cfg
        e = self.e
        R = V_S + 32
        A = V_T
        KO = V_O + 32
        LA, LB, CK = V_T+2, V_T+3, V_T+6
        RA, RB = V_KM, V_KM+2
        TA, TB = V_VA, V_VA+1
        P = V_S + 64
        add = lambda i, k: f"v_pk_add_f32 {vr(KO+16*i+k,2)}, {vr(KO+16*i+k,2)}, {vr(R+12*i+k,2)}"
        e("s_waitcnt lgkmcnt(3)", [add(0, k) for k in (8, 10, 0, 2, 4, 6)],
          f"s_mov_b32 s{S_T0}, 0xc0800000", f"s_mov_b32 s{S_T3}, 0x32000000", f"v_mov_b32 v{CK}, 0", "s_nop 0",
          "s_waitcnt lgkmcnt(0)", [add(1, k) for k in (8, 10, 0, 2, 4, 6)])
        self.stamp(6)
        e("L_final:")
        mul = lambda i, r, k: f"v_pk_mul_f32 {vr(KO+16*i+k,2)}, {vr(KO+16*i+k,2)}, {vr(r,2)} op_sel_hi:[1,0]"
        cvt = lambda i, k: f"v_cvt_pk_bf16_f32 v{P+6*i+k}, v{KO+16*i+2*k}, v{KO+16*i+2*k+1}"
        e(f"v_mov_b32 v{LA}, v{KO+8}", f"v_mov_b32 v{LB}, v{KO+16+8}", "s_nop 0",
          f"v_permlane32_swap_b32 v{KO+8}, v{LA}", f"v_permlane32_swap_b32 v{KO+16+8}, v{LB}",
          f"v_rcp_f32 v{RA}, v{LA}", f"v_rcp_f32 v{RB}, v{LB}",
          f"v_add_u32 v{TA}, s{S_T0}, v{LA}", f"v_add_u32 v{TB}, s{S_T0}, v{LB}",
          [mul(0, RA, k) for k in range(0, 12, 2)], f"v_max_u32 v{TA}, v{TA}, v{TB}",
          [cvt(0, k) for k in range(4)],
          f"ds_write_b64 v{A+4}, {vr(P,2)}", f"ds_write_b64 v{A+4}, {vr(P+2,2)} offset:16",
          [cvt(0, k) for k in (4, 5)],
          [mul(1, RB, k) for k in (8, 10, 0, 2, 4, 6)], f"v_cmp_gt_u32 {sr(S_STAMP-2,2)}, s{S_T3}, v{TA}",
          [cvt(1, k) for k in (4, 5, 0, 1, 2, 3)],
          f"v_permlane32_swap_b32 v{P+4}, v{P+10}", f"v_permlane32_swap_b32 v{P+5}, v{P+11}",
          f"ds_write_b64 v{A+4}, {vr(P+6,2)} offset:1280", f"ds_write_b64 v{A+4}, {vr(P+8,2)} offset:{1280+16}",
          f"ds_write_b64 v{A+5}, {vr(P+4,2)} offset:32")
        for k in range(5):
            e(f"v_dot2_f32_bf16 v{CK}, v{P+k}, 0, v{CK}")
        O2 = V_S + 80
        e("s_waitcnt lgkmcnt(0)",
          f"ds_read_b128 {vr(O2,4)}, v{A+1}", f"ds_read_b128 {vr(O2+4,4)}, v{A+1} offset:1024", f"ds_read_b64 {vr(O2+8,2)}, v{A} offset:2048")
        for k in range(5, 10):
            e(f"v_dot2_f32_bf16 v{CK}, v{P+k}, 0, v{CK}")
        e("s_nop 2",
          f"v_cmp_o_f32 vcc, v{CK}, v{CK}",
          f"s_nop 1",
          f"s_and_b64 vcc, vcc, {sr(S_STAMP-2,2)}",
          f"s_andn2_b64 vcc, exec, vcc",
          f"s_cbranch_scc1 L_slow",
          "L_store:")
        fl = (" " + c.stflags) if c.stflags else ""
        e("s_waitcnt lgkmcnt(2)", f"buffer_store_dwordx4 {vr(O2,4)}, v{V_DMA}, {sr(S_O,4)}, s{S_Q1} offen{fl}",
          "s_waitcnt lgkmcnt(1)", f"buffer_store_dwordx4 {vr(O2+4,4)}, v{V_DMA}, {sr(S_O,4)}, s{S_Q1} offen offset:1024{fl}",
          "s_waitcnt lgkmcnt(0)", f"buffer_store_dwordx2 {vr(O2+8,2)}, v{V_L8}, {sr(S_O,4)}, s{S_Q1} offen offset:2048{fl}")
        if c.stamps:
            self.stamp(7)
            e("s_waitcnt vmcnt(0)")
            self.stamp(8)
            e("s_load_dwordx2 s[4:5], s[0:1], 40", "s_waitcnt lgkmcnt(0)",
              "s_mov_b32 s6, 0x1000000", "s_mov_b32 s7, 0x20000",
              f"s_lshl_b32 s8, s2, 3", f"s_add_u32 s8, s8, s{S_W}", "s_lshl_b32 s8, s8, 7", "v_mov_b32 v1, 0")
            for k in range(9):
                e(f"v_mov_b32 v2, s{S_STAMP+2*k}", f"v_mov_b32 v3, s{S_STAMP+2*k+1}", f"buffer_store_dwordx2 v[2:3], v1, s[4:7], s8 offen offset:{8*k}", "s_nop 1")
            e("s_memrealtime s[10:11]", "s_waitcnt lgkmcnt(0)", "v_mov_b32 v2, s10", "v_mov_b32 v3, s11", f"buffer_store_dwordx2 v[2:3], v1, s[4:7], s8 offen offset:72",
              "s_nop 1", "v_mov_b32 v2, s70", "v_mov_b32 v3, s71", f"buffer_store_dwordx2 v[2:3], v1, s[4:7], s8 offen offset:80")
        e("L_end:", "s_endpgm")
        if c.loopbar_slot:
            e("L_bar:", "s_waitcnt vmcnt(0)", "s_barrier", "s_branch L_bar_ret")

    def slow(self):
        e = self.e
        S0 = V_S; BI = V_S + 32; MA, MB = V_S+90, V_S+91
        GV = V_S + 92
        SOFF = S_T0
        e("L_slow:",
          f"s_cmp_eq_u32 s{S_CNT}, 77", "s_cbranch_scc1 L_store",
          f"s_mov_b32 s{S_CNT}, 77", "s_waitcnt lgkmcnt(0)",
          f"v_mov_b32 v{MA}, 0xff800000", f"v_mov_b32 v{MB}, 0xff800000",
          f"s_mov_b32 s{SOFF}, s{S_HB}", f"s_add_u32 s{S_T1}, s{S_HB}, {HEAD_BYTES}",
          "L_slow1:",
          f"buffer_load_dwordx2 {vr(V_KT,2)}, v{V_ROW}, {sr(S_K,4)}, s{SOFF} offen offset:32",
          f"buffer_load_dwordx4 {vr(V_KM,4)}, v{V_ROW}, {sr(S_K,4)}, s{SOFF} offen",
          "s_waitcnt vmcnt(0)",
          self.m2b(S0, V_KT, 1), "s_nop 15", "s_nop 1",
          self.m0(S0, V_KM, 1, 0), self.m0(S0, V_KM, 1, 1), "s_nop 11")
        for k in range(8):
            e(f"v_max3_f32 v{MA}, v{S0+2*k}, v{S0+2*k+1}, v{MA}")
        for k in range(8):
            e(f"v_max3_f32 v{MB}, v{S0+16+2*k}, v{S0+16+2*k+1}, v{MB}")
        e(f"s_add_u32 s{SOFF}, s{SOFF}, 1280", f"s_cmp_lt_u32 s{SOFF}, s{S_T1}", "s_cbranch_scc1 L_slow1")
        e(f"v_mov_b32 v{GV}, v{MA}", f"v_mov_b32 v{GV+1}, v{MB}", "s_nop 1",
          f"v_permlane32_swap_b32 v{MA}, v{GV}", f"v_permlane32_swap_b32 v{MB}, v{GV+1}", "s_nop 1",
          f"v_max_f32 v{MA}, v{MA}, v{GV}", f"v_max_f32 v{MB}, v{MB}, v{GV+1}")
        for k in range(16):
            e(f"v_sub_f32 v{BI+k}, 0, v{MA}", f"v_sub_f32 v{BI+16+k}, 0, v{MB}")
        for k in range(32):
            e(f"v_mov_b32 v{V_O+32+k}, 0")
        e(f"v_and_b32 v{GV+1}, 31, v0", f"v_bfe_u32 v{GV}, v0, 5, 1", f"v_mul_u32_u24 v{GV}, 320, v{GV}",
          f"v_lshl_add_u32 v{GV}, v{GV+1}, 1, v{GV}",
          f"v_cmp_eq_u32 vcc, 20, v{GV+1}", f"v_mov_b32 v{GV+2}, 0x3f803f80", "s_nop 0",
          f"v_cndmask_b32 v{GV+2}, 0, v{GV+2}, vcc")
        for k in range(8):
            e(f"v_mov_b32 v{V_VA+k}, v{GV+2}")
        e(f"v_cmp_gt_u32 {sr(S_T2,2)}, 20, v{GV+1}",
          f"s_mov_b32 s{SOFF}, s{S_HB}",
          "L_slow2:",
          f"buffer_load_dwordx2 {vr(V_KT,2)}, v{V_ROW}, {sr(S_K,4)}, s{SOFF} offen offset:32",
          f"buffer_load_dwordx4 {vr(V_KM,4)}, v{V_ROW}, {sr(S_K,4)}, s{SOFF} offen",
          f"s_mov_b64 exec, {sr(S_T2,2)}")
        G = V_S + 64
        for s in range(2):
            for jj in range(8):
                e(f"buffer_load_ushort v{G+8*s+jj}, v{GV}, {sr(S_V,4)}, s{SOFF} offen offset:{640*s+40*jj}")
        e("s_waitcnt vmcnt(0)")
        for k in range(8):
            e(f"v_lshl_or_b32 v{V_VA+k}, v{G+2*k+1}, 16, v{G+2*k}")
        e("s_mov_b64 exec, -1", "s_nop 3",
          self.m2b(S0, V_KT, 1, c=vr(BI, 32)), "s_nop 15", "s_nop 1",
          self.m0(S0, V_KM, 1, 0), self.m0(S0, V_KM, 1, 1), "s_nop 11")
        for k in range(32):
            e(f"v_exp_f32 v{S0+k}, v{S0+k}")
        e("s_nop 1", self.smf(1, 0, V_VA, S0, 0), self.smf(1, 1, V_VA, S0, 0), self.smf(1, 0, V_VB, S0, 1), self.smf(1, 1, V_VB, S0, 1),
          f"s_add_u32 s{SOFF}, s{SOFF}, 1280", f"s_cmp_lt_u32 s{SOFF}, s{S_T1}", "s_cbranch_scc1 L_slow2",
          f"s_mov_b32 s{S_T0}, 0xc0800000", f"s_mov_b32 s{S_T3}, 0x32000000", f"v_mov_b32 v{V_T+6}, 0", "s_nop 11", "s_branch L_final")

    def build(self):
        self.setup_sched(); self.prologue(); self.main(); self.epilogue(); self.slow()
        hdr = open("cdna_kernels/%s.s.ref" % NAME).read().split("; @launch")[0]
        txt = hdr + f"; @launch grid=(256,1,1) block=(512,1,1) lds={LDS_BYTES}\n"
        txt += DOC
        txt += f'.amdgcn_target "amdgcn-amd-amdhsa--gfx950"\n.text\n.globl {NAME}_kernel\n.p2align 8\n.type {NAME}_kernel,@function\n{NAME}_kernel:\n'
        for x in self.L:
            txt += (x if x.endswith(":") or x.startswith(".") else "    " + x) + "\n"
        nv = 256 if self.cfg.maxv else (V_END + 7)//8*8
        txt += f""".section .rodata,"a"
.p2align 6
.amdhsa_kernel {NAME}_kernel
  .amdhsa_next_free_vgpr {nv}
  .amdhsa_next_free_sgpr 80
  .amdhsa_accum_offset {nv}
  .amdhsa_group_segment_fixed_size 0
  .amdhsa_kernarg_size 48
  .amdhsa_user_sgpr_count 2
  .amdhsa_user_sgpr_kernarg_segment_ptr 1
  .amdhsa_system_sgpr_workgroup_id_x 1
.end_amdhsa_kernel
"""
        return txt

DOC = """; Fused attention, one workgroup (8 waves) per (head, 512-query quarter).
"""

def regs_of(tok):
    m = re.fullmatch(r"v\[(\d+):(\d+)\]", tok)
    if m: return set(range(int(m.group(1)), int(m.group(2))+1))
    m = re.fullmatch(r"v(\d+)", tok)
    if m: return {int(m.group(1))}
    return set()
def parse(ins):
    p = ins.split(None, 1)
    op = p[0]; ops = [x.strip() for x in p[1].split(",")] if len(p) > 1 else []
    if ops: ops[-1] = ops[-1].split()[0] if ops[-1] else ops[-1]
    return op, ops
def states(op, ops):
    if op == "s_nop": return int(ops[0]) + 1
    return 1
TRANS = ("v_exp_f32", "v_rcp_f32")
def check(seq, label=""):
    errs = []
    P = [parse(x) for x in seq]
    for i, (op, ops) in enumerate(P):
        is_m = op.startswith("v_mfma") or op.startswith("v_smfmac")
        is_valu = op.startswith("v_") and not is_m
        if not (is_m or is_valu): continue
        D = regs_of(ops[0])
        if op.startswith("v_permlane32_swap"): D |= regs_of(ops[1])
        passes = 16 if "_2b_" in op else 8
        C = (D if op.startswith("v_smfmac") else regs_of(ops[3])) if is_m else set()
        dist = 0
        for k in range(i+1, min(i+40, len(P))):
            op2, ops2 = P[k]
            m2 = op2.startswith("v_mfma") or op2.startswith("v_smfmac")
            valu2 = op2.startswith("v_") and not m2
            mem2 = op2.startswith("ds_") or op2.startswith("buffer_")
            allr = [regs_of(x) for x in ops2]
            need = 0
            if is_m:
                if m2:
                    D2 = allr[0]; A2 = allr[1] | allr[2]
                    C2 = D2 if op2.startswith("v_smfmac") else allr[3]
                    if op2.startswith("v_smfmac"): A2 |= allr[3]
                    p2 = 16 if "_2b_" in op2 else 8
                    if A2 & D: need = max(need, {8: 12, 16: 20}[passes])
                    if C2 & D and not (C2 == D and p2 == passes): need = max(need, {8: 10, 16: 18}[passes])
                    if (D2 & D) and not (C2 & D) : need = max(need, 0)
                elif valu2 or mem2:
                    touched = set().union(*allr) if allr else set()
                    if touched & D: need = max(need, {8: 12, 16: 20}[passes])
                    if valu2 and (allr[0] & C): need = max(need, {8: 7, 16: 15}[passes])
            else:
                if m2:
                    rd = allr[1] | allr[2] | allr[3] | (allr[0] if op2.startswith("v_smfmac") else set())
                    if rd & D: need = 2
                elif valu2:
                    rd = set().union(*allr[1:]) if len(allr) > 1 else set()
                    if op2.startswith("v_permlane"): rd |= allr[0]
                    if op2.startswith(("v_fmac", "v_dot2c")): rd |= allr[0]
                    if rd & D:
                        if op in TRANS and op2 not in TRANS: need = max(need, 1)
                        if op2.startswith("v_permlane"): need = max(need, 2)
                        if op2.startswith(("v_readfirstlane", "v_readlane")): need = max(need, 1)
                        if op.startswith("v_dot2") and not (op2 == op and (allr[3] & D) and not ((allr[1] | allr[2]) & D)): need = max(need, 3)
                if op.startswith(("v_cmp", "v_readfirstlane")) and valu2:
                    dst = ops[0]
                    if any(dst == x for x in ops2[1:]): need = max(need, 2)
                if op.startswith(("v_cmp", "v_readfirstlane")) and op2.startswith("buffer_"):
                    if any(ops[0] == x for x in ops2): need = max(need, 5)
            if need > dist:
                errs.append(f"{label}: [{i}] {seq[i]}  ->  [{k}] {seq[k]} : need {need} have {dist}")
            dist += states(op2, ops2)
            if op2 in ("s_branch", "s_endpgm"): break
    for i, (op, ops) in enumerate(P):
        if op in ("buffer_store_dwordx4", "ds_write_b128"):
            d = regs_of(ops[0] if op.startswith("buffer") else ops[1])
            for k in (i+1, i+2):
                if k < len(P) and P[k][0].startswith("v_") and regs_of(P[k][1][0]) & d: errs.append(f"{label}: store WAR {seq[i]} -> {seq[k]}")
        if op.startswith("s_") and ops and ops[0] == "m0" and i+1 < len(P) and P[i+1][0].startswith("buffer_load") and "lds" in seq[i+1]:
            errs.append(f"{label}: m0 hazard {seq[i]} -> {seq[i+1]}")
    return errs

def main():
    ap = argparse.ArgumentParser()
    ap.add_argument("-o", default="cdna_kernels/%s.s" % NAME)
    ap.add_argument("--stamps", action="store_true")
    ap.add_argument("--p0", type=int, default=2)
    ap.add_argument("--pa", type=int, default=0)
    ap.add_argument("--obar", type=int, default=1)
    ap.add_argument("--pst", action="store_true")
    ap.add_argument("--stflags", default="")
    ap.add_argument("--dma_start", type=int, default=0)
    ap.add_argument("--dma_pos", default="1,4")
    ap.add_argument("--bars", default="1,3,9")
    ap.add_argument("--loopbar_slot", type=int, default=27)
    ap.add_argument("--prio", default="3,2,2,1,1,0")
    ap.add_argument("--align", type=int, default=6)
    ap.add_argument("--maxv", action="store_true")
    c = ap.parse_args()
    c.dma_pos = [int(x) for x in c.dma_pos.split(",")]
    c.bars = [int(x) for x in c.bars.split(",")] if c.bars else []
    c.prio = [int(x) for x in c.prio.split(",")] if c.prio else []
    g = Gen(c)
    txt = g.build()
    code = lambda L: [x for x in L if not (x.endswith(":") or x.startswith("."))]
    errs = check(code(g.L), "linear")
    errs += check(code(g.L[g.loop_start:g.loop_end] + g.L[g.loop_start:g.loop_end]), "loop")
    for x in errs: print("HAZARD", x)
    open(c.o, "w").write(txt)
    print("wrote", c.o, "instrs", len(code(g.L)), "vgprs", V_END)
main()
```

```python
import sys, math, struct, re, argparse

NAME = "standalone__fused_io_aware_attn__prompt"
def f32bits(x): return struct.unpack("<I", struct.pack("<f", x))[0]
def vr(b, n=1): return f"v[{b}:{b+n-1}]" if n > 1 else f"v{b}"
def sr(b, n=1): return f"s[{b}:{b+n-1}]" if n > 1 else f"s{b}"

V_TID = 0
V_T = 1
V_O = 8
V_S = V_O + 64
V_Q = V_S + 96
V_QT = V_Q + 16
V_KM = V_QT + 4
V_KT = V_KM + 4
V_VA = V_KT + 2
V_VB = V_VA + 4
V_IDX = V_VB + 4
V_AK = V_IDX + 1
V_AV = V_AK + 1
V_INC = V_AV + 1
V_ROW = V_INC + 1
V_ROWL = V_ROW + 1
V_DMA = V_ROWL + 1
V_L8 = V_DMA + 1
V_END = V_L8 + 1

S_Q, S_K, S_V, S_O, S_D = 12, 16, 20, 24, 28
S_W, S_HB, S_Q0, S_Q1, S_K0, S_DOFF, S_C, S_MSK, S_CNT, S_INC, S_T0, S_T1, S_T2, S_T3 = range(32, 46)
S_C2 = 72
S_STAMP = 48
TOTAL_BYTES = 2*32*2048*20*2
HEAD_BYTES = 2048*40
HALF_BYTES = 1024*40
L_ONES = 0
L_V = [4096, 122880]
L_K = [43008, 81920]
L_Q = 143360
LDS_BYTES = 163840

class Gen:
    def __init__(self, cfg):
        self.cfg = cfg
        self.L = []
        self.vm = []
    def e(self, *xs):
        for x in xs:
            if isinstance(x, (list, tuple)): self.e(*x)
            else: self.L.append(x)
    def vmem(self, ins, tag):
        self.e(ins); self.vm.append(tag)
    def vmwait(self, tag):
        i = max(k for k, t in enumerate(self.vm) if t == tag)
        n = len(self.vm) - 1 - i
        return f"s_waitcnt vmcnt({n})"
    def stamp(self, k, pro=False):
        if self.cfg.pst and k in (3, 4, 5, 6) and not pro: return
        if pro and not self.cfg.pst: return
        if self.cfg.stamps:
            self.e(f"s_memtime {sr(S_STAMP + 2*k, 2)}")

    def dma_round(self, n):
        out = []
        if n >= 2 and n % 2 == 0:
            out.append(f"s_add_u32 m0, m0, 4096")
            out.append(f"s_add_u32 s{S_DOFF}, s{S_DOFF}, 4096")
        off = (n & 1) * 2048
        out.append(("VM", f"buffer_load_dwordx4 v{V_DMA}, {sr(S_D,4)}, s{S_DOFF} offen" + (f" offset:{off}" if off else "") + " lds", f"r{n}"))
        return out
    def emit_items(self, items):
        for it in items:
            if isinstance(it, tuple) and it[0] == "VM": self.vmem(it[1], it[2])
            elif callable(it): self.e(it())
            else: self.e(it)

    def qconv(self, r, t0, t1):
        return [f"v_lshlrev_b32 v{t0}, 16, v{r}",
                f"v_and_b32 v{t1}, s{S_MSK}, v{r}",
                f"v_pk_mul_f32 {vr(t0,2)}, {vr(t0,2)}, {sr(S_C2,2)}",
                f"v_cvt_pk_bf16_f32 v{r}, v{t0}, v{t1}"]
    def qconv_many(self, regs):
        out = []
        for i in range(0, len(regs), 2):
            a = self.qconv(regs[i], V_KM, V_KM+1); b = self.qconv(regs[i+1], V_KM+2, V_KM+3)
            for x, y in zip(a, b): out += [x, y]
        return out

    def m2b(self, sbuf, kt, pair, c="0"):
        return f"v_mfma_f32_32x32x4_2b_bf16 {vr(sbuf,32)}, {vr(kt,2)}, {vr(V_QT+2*pair,2)}, {c} cbsz:1 abid:0"
    def m0(self, sbuf, km, pair, i):
        d = sbuf + 16*i
        return f"v_mfma_f32_32x32x16_bf16 {vr(d,16)}, {vr(km,4)}, {vr(V_Q+8*pair+4*i,4)}, {vr(d,16)}"
    def smf(self, pair, i, vreg, sbuf, half):
        return f"v_smfmac_f32_32x32x32_bf16 {vr(V_O+32*pair+16*i,16)}, {vr(vreg,4)}, {vr(sbuf+16*i+8*half,8)}, v{V_IDX}"

    def slot(self, j, km=V_KM, kt=V_KT, koff=None, voff=None, do_qk=True, do_pv=True, waits=True,
             extras=None, prio=None, kload=True, vload=True):
        extras = extras or {}
        sc = V_S + 32*(j % 3); sn = V_S + 32*((j+1) % 3); sp = V_S + 32*((j-1) % 3)
        pn = (j+1) & 1; pp = (j-1) & 1
        even = (j & 1) == 0
        ex = [f"v_exp_f32 v{sc+i}, v{sc+i}" for i in range(32)]
        def ds(kind):
            if not even: return []
            if kind == 'kt': return [f"ds_read_b64 {vr(V_KT,2)}, v{V_AK} offset:{koff+32}"] if kload else []
            if kind == 'km': return [f"ds_read_b64 {vr(V_KM,2)}, v{V_AK} offset:{koff}", f"ds_read_b64 {vr(V_KM+2,2)}, v{V_AK} offset:{koff+8}"] if kload else []
            if kind == 'va': return [f"ds_read_b64_tr_b16 {vr(V_VA,2)}, v{V_AV} offset:{voff}", f"ds_read_b64_tr_b16 {vr(V_VA+2,2)}, v{V_AV} offset:{voff+160}"] if vload else []
            if kind == 'vb': return [f"ds_read_b64_tr_b16 {vr(V_VB,2)}, v{V_AV} offset:{voff+640}", f"ds_read_b64_tr_b16 {vr(V_VB+2,2)}, v{V_AV} offset:{voff+800}"] if vload else []
        def w(n):
            if even or not waits: return []
            if isinstance(waits, dict): return [f"s_waitcnt lgkmcnt({waits[n]})"] if n in waits else []
            return [f"s_waitcnt lgkmcnt({n})"]
        X = lambda k: extras.get(k, [])
        qk = lambda x: [x] if do_qk else []
        pv = lambda x: [x] if do_pv else []
        seq = []
        if prio is not None: seq.append(f"s_setprio {prio}")
        seq += X(0) + w(6) + qk(self.m2b(sn, kt, pn)) + ds('kt') + ex[0:4] + X(1) + ex[4:8]
        seq += w(4) + pv(self.smf(pp, 0, V_VA, sp, 0)) + X(2) + ex[8:12]
        seq += pv(self.smf(pp, 1, V_VA, sp, 0)) + ds('va') + ex[12:16]
        seq += w(2) + qk(self.m0(sn, km, pn, 0)) + X(3) + ex[16:20]
        seq += qk(self.m0(sn, km, pn, 1)) + ds('km') + ex[20:24]
        seq += w(0) + pv(self.smf(pp, 0, V_VB, sp, 1)) + X(4) + ex[24:28]
        seq += pv(self.smf(pp, 1, V_VB, sp, 1)) + ds('vb') + ex[28:32] + X(5)
        self.emit_items(seq)

    def prologue(self):
        c = self.cfg
        e = self.e
        scale = math.log2(math.e) / math.sqrt(20.0)
        QL = V_S + 64
        e(f"s_cmp_ge_u32 s2, 256",
          f"s_cbranch_scc1 L_end",
          f"s_load_dwordx8 s[4:11], s[0:1], 0")
        self.stamp(0)
        if c.stamps: e("s_memrealtime s[70:71]")
        e(f"v_lshrrev_b32 v1, 6, v0",
          f"v_and_b32 v2, 63, v0",
          f"v_readfirstlane_b32 s{S_W}, v1",
          f"s_and_b32 s{S_T0}, s2, 7",
          f"s_lshl_b32 s{S_T0}, s{S_T0}, 3",
          f"s_lshr_b32 s{S_T1}, s2, 5",
          f"s_add_u32 s{S_T0}, s{S_T0}, s{S_T1}",
          f"s_mul_i32 s{S_HB}, s{S_T0}, {HEAD_BYTES}",
          f"s_bfe_u32 s{S_T0}, s2, 0x20003",
          f"s_mul_i32 s{S_Q0}, s{S_T0}, 20480",
          f"s_add_u32 s{S_Q0}, s{S_Q0}, s{S_HB}",
          f"v_lshlrev_b32 v{V_DMA}, 4, v2",
          f"v_lshlrev_b32 v{V_L8}, 3, v2",
          f"s_mul_i32 s{S_K0}, s{S_W}, 2560",
          f"s_add_u32 s{S_Q1}, s{S_Q0}, s{S_K0}",
          f"s_lshr_b32 s{S_T2}, s{S_W}, 2",
          f"s_and_b32 s{S_T0}, s{S_W}, 1",
          f"s_lshl_b32 s{S_T3}, s{S_T2}, 10",
          f"s_mul_i32 s{S_DOFF}, s{S_T0}, {HALF_BYTES}",
          f"s_add_u32 s{S_DOFF}, s{S_DOFF}, s{S_T3}",
          f"s_add_u32 s{S_DOFF}, s{S_DOFF}, s{S_HB}",
          f"s_mul_i32 s{S_T1}, s{S_T0}, {L_K[1]-L_K[0]}",
          f"s_add_u32 s{S_T1}, s{S_T1}, {L_K[0]}",
          f"s_mul_i32 s{S_T0}, s{S_T0}, {L_V[1]-L_V[0]}",
          f"s_add_u32 s{S_T0}, s{S_T0}, {L_V[0]}",
          f"s_mov_b32 s{S_Q+2}, {TOTAL_BYTES}",
          f"s_mov_b32 s{S_Q+3}, 0x20000",
          f"s_mov_b32 s{S_D+2}, {TOTAL_BYTES}",
          f"s_mov_b32 s{S_D+3}, 0x20000",
          f"s_bitcmp1_b32 s{S_W}, 1",
          f"s_cselect_b32 s{S_T0}, s{S_T0}, s{S_T1}",
          f"s_waitcnt lgkmcnt(0)",
          f"s_mov_b32 s{S_Q}, s4",
          f"s_mov_b32 s{S_Q+1}, s5",
          f"s_cselect_b32 s{S_D}, s8, s6",
          f"s_cselect_b32 s{S_D+1}, s9, s7",
          f"s_add_u32 m0, s{S_T0}, s{S_T3}")
        vm = self.vmem
        vm(f"buffer_load_dwordx4 {vr(QL,4)}, v{V_DMA}, {sr(S_Q,4)}, s{S_Q1} offen", "q0")
        vm(f"buffer_load_dwordx4 {vr(QL+4,4)}, v{V_DMA}, {sr(S_Q,4)}, s{S_Q1} offen offset:1024", "q1")
        vm(f"buffer_load_dwordx2 {vr(QL+8,2)}, v{V_L8}, {sr(S_Q,4)}, s{S_Q1} offen offset:2048", "q2")
        for n in range(0, c.pa + 1):
            self.emit_items(self.dma_round(n))
        e(f"s_mov_b32 s{S_C2}, 0x{f32bits(scale):08x}", f"s_mov_b32 s{S_C2+1}, 0x{f32bits(scale):08x}",
          f"s_mov_b32 s{S_MSK}, 0xffff0000",
          f"s_movk_i32 s{S_INC}, 3840",
          f"s_mov_b32 s{S_K}, s6", f"s_mov_b32 s{S_K+1}, s7", f"s_mov_b32 s{S_K+2}, {TOTAL_BYTES}", f"s_mov_b32 s{S_K+3}, 0x20000",
          f"s_mov_b32 s{S_V}, s8", f"s_mov_b32 s{S_V+1}, s9", f"s_mov_b32 s{S_V+2}, {TOTAL_BYTES}", f"s_mov_b32 s{S_V+3}, 0x20000",
          f"s_mov_b32 s{S_O}, s10", f"s_mov_b32 s{S_O+1}, s11", f"s_mov_b32 s{S_O+2}, {TOTAL_BYTES}", f"s_mov_b32 s{S_O+3}, 0x20000",
          f"v_mov_b32 v6, 0", f"v_mov_b32 v7, 0",
          f"v_and_b32 v1, 1, v0",
          f"v_cmp_eq_u32 vcc, 0, v1",
          f"v_mfma_f32_32x32x4_2b_bf16 {vr(V_O,32)}, v[6:7], v[6:7], 0",
          f"v_mfma_f32_32x32x4_2b_bf16 {vr(V_O+32,32)}, v[6:7], v[6:7], 0",
          f"v_mov_b32 v4, 0x3f80",
          f"v_lshlrev_b32 v1, 3, v0",
          f"v_mov_b32 v5, 0",
          f"v_cndmask_b32 v4, 0, v4, vcc",
          f"v_mov_b32 v{V_IDX}, 0xdddd",
          f"ds_write_b64 v1, v[4:5]",
          f"v_and_b32 v3, 31, v0",
          f"v_mul_u32_u24 v3, 40, v3",
          f"v_bfe_u32 v4, v0, 5, 1",
          f"v_lshl_add_u32 v{V_ROW}, v4, 4, v3",
          f"v_mul_u32_u24 v{V_ROWL}, 40, v2",
          f"s_mul_i32 s{S_T0}, s{S_T2}, {L_K[1]-L_K[0]}",
          f"s_add_u32 s{S_T0}, s{S_T0}, {L_K[0]}",
          f"v_add_u32 v{V_AK}, s{S_T0}, v{V_ROW}",
          f"s_mul_i32 s{S_T0}, s{S_T2}, {L_V[1]-L_V[0]}",
          f"s_add_u32 s{S_T0}, s{S_T0}, {L_V[0]-1280}",
          f"v_bfe_u32 v1, v0, 2, 2",
          f"v_lshl_add_u32 v1, v4, 3, v1",
          f"v_mul_u32_u24 v1, 40, v1",
          f"v_and_b32 v2, 19, v0",
          f"v_bfe_u32 v3, v0, 4, 1",
          f"v_and_b32 v5, 3, v0",
          f"v_lshlrev_b32 v3, 5, v3",
          f"v_lshl_add_u32 v3, v5, 3, v3",
          f"v_add3_u32 v1, v1, v3, s{S_T0}",
          f"v_lshlrev_b32 v4, 6, v4",
          f"v_lshrrev_b32 v5, 1, v5",
          f"v_lshl_add_u32 v4, v5, 3, v4",
          f"v_add_u32 v4, 160, v4",
          f"v_cmp_lt_u32 vcc, 16, v2",
          f"v_mov_b32 v3, s{S_INC}",
          f"s_add_u32 s{S_K0}, s{S_K0}, {L_Q}",
          f"v_cndmask_b32 v{V_AV}, v1, v4, vcc",
          f"v_cndmask_b32 v{V_INC}, v3, 0, vcc",
          f"v_add_u32 v5, s{S_K0}, v{V_DMA}",
          f"v_add_u32 v6, s{S_K0}, v{V_L8}",
          f"s_and_b32 s{S_T1}, s{S_W}, 3",
          f"s_mul_i32 s{S_T1}, s{S_T1}, 5120",
          f"s_mul_i32 s{S_T3}, s{S_T2}, 2560",
          f"s_add_u32 s{S_T0}, s{S_T1}, s{S_T3}",
          f"s_sub_u32 s{S_T1}, s{S_T1}, s{S_T3}",
          f"s_add_u32 s{S_T1}, s{S_T1}, {2560 + L_Q}",
          f"s_add_u32 s{S_Q1}, s{S_Q0}, s{S_T0}",
          f"s_add_u32 s{S_T0}, s{S_T0}, {L_Q}",
          f"v_add_u32 v{QL+10}, s{S_T1}, v{V_ROW}",
          f"v_add_u32 v{QL+11}, s{S_T1}, v{V_ROWL}",
          f"v_add_u32 v{QL+12}, s{S_T0}, v{V_ROW}",
          f"v_add_u32 v{QL+13}, s{S_T0}, v{V_ROWL}")
        if c.p0 > c.pa:
            if c.obar: e("s_barrier")
            for n in range(c.pa + 1, c.p0 + 1):
                self.emit_items(self.dma_round(n))
        self.stamp(1)
        e(self.vmwait("q0"))
        self.stamp(3, True)
        e(self.qconv_many(list(range(QL, QL+4))))
        e(f"ds_write_b128 v5, {vr(QL,4)}")
        e(self.vmwait("q1"))
        e(self.qconv_many(list(range(QL+4, QL+8))))
        e(f"ds_write_b128 v5, {vr(QL+4,4)} offset:1024")
        e(self.vmwait("q2"))
        self.stamp(4, True)
        e(self.qconv_many(list(range(QL+8, QL+10))))
        e(f"ds_write_b64 v6, {vr(QL+8,2)} offset:2048")
        bi = self.barrier_items(0)
        self.emit_items(["s_waitcnt lgkmcnt(0)"])
        self.stamp(5, True)
        self.emit_items(bi[:1])
        self.stamp(6, True)
        self.emit_items(bi[1:])
        self.stamp(2)
        s0 = V_S
        def rd4(dst, a, off): return [f"ds_read_b64 {vr(dst,2)}, v{a} offset:{off}", f"ds_read_b64 {vr(dst+2,2)}, v{a} offset:{off+8}"]
        e(f"ds_read_b64 {vr(V_QT,2)}, v{QL+11} offset:32",
          f"ds_read_b64 {vr(V_KT,2)}, v{V_AK} offset:32",
          rd4(V_KM, V_AK, 0), rd4(V_Q, QL+10, 0), rd4(V_Q+4, QL+10, 1280),
          f"ds_read_b64 {vr(V_QT+2,2)}, v{QL+13} offset:32",
          rd4(V_Q+8, QL+12, 0), rd4(V_Q+12, QL+12, 1280),
          "s_waitcnt lgkmcnt(11)",
          self.m2b(s0, V_KT, 0),
          "s_nop 15",
          "s_waitcnt lgkmcnt(5)", "s_nop 0",
          self.m0(s0, V_KM, 0, 0), self.m0(s0, V_KM, 0, 1),
          "s_nop 8", "s_waitcnt lgkmcnt(0)")

    def need_round(self, last_even_slot):
        t = last_even_slot // 2
        need = min(1280*(t+2), 40960)
        return (need + 2047)//2048 - 1

    def setup_sched(self):
        c = self.cfg
        bars = sorted(c.bars)
        allb = [0] + bars + ([c.loopbar_slot] if c.loopbar_slot else [])
        self.nxt_of = {}
        for a, b in zip(allb, allb[1:] + [None]): self.nxt_of[a] = b
    def barrier_items(self, slot):
        nxt = self.nxt_of[slot]
        if nxt is None: r = 19
        elif nxt == 1: r = 0
        else:
            le = nxt - 1 if (nxt - 1) % 2 == 0 else nxt - 2
            r = self.need_round(le)
        return [lambda r=r: self.vmwait(f"r{r}"), "s_barrier"]

    def main(self):
        c = self.cfg
        e = self.e
        NP = 9
        rounds = list(range(c.p0 + 1, 20))
        pos_cycle = c.dma_pos
        ext = {j: {} for j in range(NP)}
        j = c.dma_start
        k = 0
        bars = sorted(c.bars)
        while rounds:
            n = rounds.pop(0)
            p = pos_cycle[k % len(pos_cycle)]
            assert n < 10 or j >= min(b for b in bars if b >= 2), "round %d too early" % n
            ext[j].setdefault(p, []).extend(self.dma_round(n))
            k += 1
            if k % len(pos_cycle) == 0: j += 1
            assert j < NP or not rounds, "DMA rounds do not fit in the peeled slots"
        prio = lambda j: (c.prio[j % len(c.prio)] if c.prio else None)
        for j in range(NP):
            x = ext[j]
            if j in bars:
                x.setdefault(0, [])
                x[0] = self.barrier_items(j) + x[0]
            t = j // 2
            if j in (2, 8):
                x.setdefault(5, []); x[5] = x[5] + [f"v_add_u32 v{V_AV}, v{V_INC}, v{V_AV}"]
            kw = {}
            if 1 in bars and j == 0: kw = dict(kload=False)
            if 1 in bars and j == 1:
                x[0] = x[0] + [f"ds_read_b64 {vr(V_KT,2)}, v{V_AK} offset:{1280+32}", f"ds_read_b64 {vr(V_KM,2)}, v{V_AK} offset:1280", f"ds_read_b64 {vr(V_KM+2,2)}, v{V_AK} offset:{1280+8}"]
                kw = dict(waits={6: 2, 2: 0})
            self.slot(j, koff=(t+1)*1280, voff=((t+1) if t < 2 else (t-2))*1280, extras=x, prio=prio(j), do_pv=(j > 0), **kw)
            if j == 0: self.stamp(3)
        self.stamp(4)
        if 9 in bars:
            self.emit_items(self.barrier_items(9))
        e(f"s_mov_b32 s{S_CNT}, 9")
        if c.align: e(f".p2align {c.align}")
        e("L_loop:")
        self.loop_start = len(self.L)
        for jj in range(6):
            j = 9 + jj
            t = j // 2
            x = {}
            if jj == 0 and c.loopbar_slot:
                it = (c.loopbar_slot - 9)//6
                x[0] = [f"s_cmp_eq_u32 s{S_CNT}, {9 - it}", "s_cbranch_scc1 L_bar", "L_bar_ret:"]
            if jj == 5:
                x[4] = [f"s_sub_u32 s{S_CNT}, s{S_CNT}, 1"]
                x[5] = [f"v_add_u32 v{V_AK}, s{S_INC}, v{V_AK}", f"v_add_u32 v{V_AV}, v{V_INC}, v{V_AV}",
                        f"s_cmp_lg_u32 s{S_CNT}, 0", "s_cbranch_scc1 L_loop"]
            self.slot(j, koff=(t+1)*1280, voff=(t-5)*1280, extras=x, prio=prio(j))
        self.loop_end = len(self.L)
        sc = V_S + 32*(63 % 3); sp = V_S + 32*(62 % 3)
        ex = [f"v_exp_f32 v{sc+i}, v{sc+i}" for i in range(32)]
        A = V_T
        R = V_S + 32
        if c.prio: e(f"s_setprio {c.prio[63 % len(c.prio)]}")
        wr = [f"ds_write_b128 v{A}, {vr(V_O+16*i+4*k,4)} offset:{(3*i+k)*1024}" for i in range(2) for k in range(3)]
        rd = [f"ds_read_b128 {vr(R+12*i+4*k,4)}, v{A+1} offset:{(3*i+k)*1024}" for i in range(2) for k in (2, 0, 1)]
        e("s_waitcnt lgkmcnt(4)", self.smf(0, 0, V_VA, sp, 0),
          f"s_lshr_b32 s{S_T0}, s{S_W}, 1", f"s_mul_i32 s{S_T0}, s{S_T0}, 38912", f"s_and_b32 s{S_T1}, s{S_W}, 1",
          ex[0:3],
          "s_waitcnt lgkmcnt(0)", self.smf(0, 0, V_VB, sp, 1),
          f"s_mul_i32 s{S_T1}, s{S_T1}, 6144", f"s_add_u32 s{S_T0}, s{S_T0}, s{S_T1}", f"s_add_u32 s{S_T0}, s{S_T0}, 6144",
          ex[3:6], self.smf(0, 1, V_VA, sp, 0),
          f"s_add_u32 s{S_T1}, s{S_T0}, {2*38912}", f"s_sub_u32 s{S_T2}, s{S_T0}, {2*38912}",
          f"s_cmp_lt_u32 s{S_W}, 4", f"s_cselect_b32 s{S_T1}, s{S_T1}, s{S_T2}",
          ex[6:9], self.smf(0, 1, V_VB, sp, 1),
          f"v_add_u32 v{A}, s{S_T0}, v{V_DMA}",
          f"v_add_u32 v{A+1}, s{S_T1}, v{V_DMA}")
        if c.loopbar_slot < 27: e("s_barrier")
        e(ex[9:11], wr[0], ex[11:12], wr[1], self.smf(1, 0, V_VA, sc, 0), ex[12:13], wr[2], ex[13:17], wr[3], ex[17:18], wr[4], self.smf(1, 0, V_VB, sc, 1),
          ex[18:19], wr[5],
          f"v_bfe_u32 v{A+4}, v0, 5, 1", f"v_lshlrev_b32 v{A+4}, 3, v{A+4}", f"v_sub_u32 v{A+4}, v{V_ROW}, v{A+4}",
          f"v_add_u32 v{A+4}, s{S_T1}, v{A+4}", f"v_add_u32 v{A+5}, s{S_T1}, v{V_ROWL}", f"v_add_u32 v{A}, s{S_T1}, v{V_L8}",
          ex[19:26], self.smf(1, 1, V_VA, sc, 0),
          "s_waitcnt lgkmcnt(0)", "s_barrier", rd[0:3], ex[26:29], rd[3:6], ex[29:32], "s_nop 1", self.smf(1, 1, V_VB, sc, 1))
        self.stamp(5)

    def epilogue(self):
        c = self.cfg
        e = self.e
        R = V_S + 32
        A = V_T
        KO = V_O + 32
        LA, LB, CK = V_T+2, V_T+3, V_T+6
        RA, RB = V_KM, V_KM+2
        TA, TB = V_VA, V_VA+1
        P = V_S + 64
        add = lambda i, k: f"v_pk_add_f32 {vr(KO+16*i+k,2)}, {vr(KO+16*i+k,2)}, {vr(R+12*i+k,2)}"
        e("s_waitcnt lgkmcnt(3)", [add(0, k) for k in (8, 10, 0, 2, 4, 6)],
          f"s_mov_b32 s{S_T0}, 0xc0800000", f"s_mov_b32 s{S_T3}, 0x32000000", f"v_mov_b32 v{CK}, 0", "s_nop 0",
          "s_waitcnt lgkmcnt(0)", [add(1, k) for k in (8, 10, 0, 2, 4, 6)])
        self.stamp(6)
        e("L_final:")
        mul = lambda i, r, k: f"v_pk_mul_f32 {vr(KO+16*i+k,2)}, {vr(KO+16*i+k,2)}, {vr(r,2)} op_sel_hi:[1,0]"
        cvt = lambda i, k: f"v_cvt_pk_bf16_f32 v{P+6*i+k}, v{KO+16*i+2*k}, v{KO+16*i+2*k+1}"
        e(f"v_mov_b32 v{LA}, v{KO+8}", f"v_mov_b32 v{LB}, v{KO+16+8}", "s_nop 0",
          f"v_permlane32_swap_b32 v{KO+8}, v{LA}", f"v_permlane32_swap_b32 v{KO+16+8}, v{LB}",
          f"v_rcp_f32 v{RA}, v{LA}", f"v_rcp_f32 v{RB}, v{LB}",
          f"v_add_u32 v{TA}, s{S_T0}, v{LA}", f"v_add_u32 v{TB}, s{S_T0}, v{LB}",
          [mul(0, RA, k) for k in range(0, 12, 2)], f"v_max_u32 v{TA}, v{TA}, v{TB}",
          [cvt(0, k) for k in range(4)],
          f"ds_write_b64 v{A+4}, {vr(P,2)}", f"ds_write_b64 v{A+4}, {vr(P+2,2)} offset:16",
          [cvt(0, k) for k in (4, 5)],
          [mul(1, RB, k) for k in (8, 10, 0, 2, 4, 6)], f"v_cmp_gt_u32 {sr(S_STAMP-2,2)}, s{S_T3}, v{TA}",
          [cvt(1, k) for k in (4, 5, 0, 1, 2, 3)],
          f"v_permlane32_swap_b32 v{P+4}, v{P+10}", f"v_permlane32_swap_b32 v{P+5}, v{P+11}",
          f"ds_write_b64 v{A+4}, {vr(P+6,2)} offset:1280", f"ds_write_b64 v{A+4}, {vr(P+8,2)} offset:{1280+16}",
          f"ds_write_b64 v{A+5}, {vr(P+4,2)} offset:32")
        for k in range(5):
            e(f"v_dot2_f32_bf16 v{CK}, v{P+k}, 0, v{CK}")
        O2 = V_S + 80
        e("s_waitcnt lgkmcnt(0)",
          f"ds_read_b128 {vr(O2,4)}, v{A+1}", f"ds_read_b128 {vr(O2+4,4)}, v{A+1} offset:1024", f"ds_read_b64 {vr(O2+8,2)}, v{A} offset:2048")
        for k in range(5, 10):
            e(f"v_dot2_f32_bf16 v{CK}, v{P+k}, 0, v{CK}")
        e("s_nop 2",
          f"v_cmp_o_f32 vcc, v{CK}, v{CK}",
          f"s_nop 1",
          f"s_and_b64 vcc, vcc, {sr(S_STAMP-2,2)}",
          f"s_andn2_b64 vcc, exec, vcc",
          f"s_cbranch_scc1 L_slow",
          "L_store:")
        fl = (" " + c.stflags) if c.stflags else ""
        e("s_waitcnt lgkmcnt(2)", f"buffer_store_dwordx4 {vr(O2,4)}, v{V_DMA}, {sr(S_O,4)}, s{S_Q1} offen{fl}",
          "s_waitcnt lgkmcnt(1)", f"buffer_store_dwordx4 {vr(O2+4,4)}, v{V_DMA}, {sr(S_O,4)}, s{S_Q1} offen offset:1024{fl}",
          "s_waitcnt lgkmcnt(0)", f"buffer_store_dwordx2 {vr(O2+8,2)}, v{V_L8}, {sr(S_O,4)}, s{S_Q1} offen offset:2048{fl}")
        if c.stamps:
            self.stamp(7)
            e("s_waitcnt vmcnt(0)")
            self.stamp(8)
            if c.dbg:
                e("s_load_dwordx2 s[4:5], s[0:1], 32", "s_memrealtime s[10:11]", "s_waitcnt lgkmcnt(0)",
                  "s_mov_b32 s6, 256", "s_mov_b32 s7, 0x20000", "v_mov_b32 v1, 0", "s_mov_b64 exec, 1",
                  "s_not_b32 s8, s70", "v_mov_b32 v2, s8", "buffer_atomic_umax v2, v1, s[4:7], 0 offen",
                  "v_mov_b32 v3, s10", "buffer_atomic_umax v3, v1, s[4:7], 0 offen offset:4",
                  "v_mov_b32 v4, s70", "buffer_atomic_umax v4, v1, s[4:7], 0 offen offset:8",
                  "s_not_b32 s8, s10", "v_mov_b32 v5, s8", "buffer_atomic_umax v5, v1, s[4:7], 0 offen offset:12")
                for k in range(1, 9):
                    e(f"s_sub_u32 s8, s{S_STAMP+2*k}, s{S_STAMP}", f"v_mov_b32 v{8+k}, s8", f"buffer_atomic_umax v{8+k}, v1, s[4:7], 0 offen offset:{12+4*k}")
                e(f"s_sub_u32 s8, s10, s70", f"v_mov_b32 v6, s8", f"buffer_atomic_umax v6, v1, s[4:7], 0 offen offset:48")
                e("s_endpgm")
            e("s_load_dwordx2 s[4:5], s[0:1], 40", "s_waitcnt lgkmcnt(0)",
              "s_mov_b32 s6, 0x1000000", "s_mov_b32 s7, 0x20000",
              f"s_lshl_b32 s8, s2, 3", f"s_add_u32 s8, s8, s{S_W}", "s_lshl_b32 s8, s8, 7", "v_mov_b32 v1, 0")
            for k in range(9):
                e(f"v_mov_b32 v2, s{S_STAMP+2*k}", f"v_mov_b32 v3, s{S_STAMP+2*k+1}", f"buffer_store_dwordx2 v[2:3], v1, s[4:7], s8 offen offset:{8*k}", "s_nop 1")
            e("s_memrealtime s[10:11]", "s_waitcnt lgkmcnt(0)", "v_mov_b32 v2, s10", "v_mov_b32 v3, s11", f"buffer_store_dwordx2 v[2:3], v1, s[4:7], s8 offen offset:72",
              "s_nop 1", "v_mov_b32 v2, s70", "v_mov_b32 v3, s71", f"buffer_store_dwordx2 v[2:3], v1, s[4:7], s8 offen offset:80")
        if c.dummy:
            for _ in range(5): e(f"v_subrev_u32 v{V_AK}, s{S_INC}, v{V_AK}", f"v_sub_u32 v{V_AV}, v{V_AV}, v{V_INC}")
            e("s_waitcnt vmcnt(0)", "s_barrier", f"s_mov_b32 s{S_CNT}, {c.dummy}", ".p2align 6", "L_dummy:")
            for jj in range(6):
                j = 9 + jj; t = j // 2; x = {}
                if jj == 5:
                    x[4] = [f"s_sub_u32 s{S_CNT}, s{S_CNT}, 1"]
                    x[5] = [f"s_cmp_lg_u32 s{S_CNT}, 0", "s_cbranch_scc1 L_dummy"]
                self.slot(j, koff=(t+1)*1280, voff=(t-5)*1280, extras=x, prio=c.prio[j % len(c.prio)])
        e("L_end:", "s_endpgm")
        if c.loopbar_slot:
            e("L_bar:", "s_waitcnt vmcnt(0)", "s_barrier", "s_branch L_bar_ret")

    def slow(self):
        e = self.e
        S0 = V_S; BI = V_S + 32; MA, MB = V_S+90, V_S+91
        GV = V_S + 92
        SOFF = S_T0
        e("L_slow:",
          f"s_cmp_eq_u32 s{S_CNT}, 77", "s_cbranch_scc1 L_store",
          f"s_mov_b32 s{S_CNT}, 77", "s_waitcnt lgkmcnt(0)",
          f"v_mov_b32 v{MA}, 0xff800000", f"v_mov_b32 v{MB}, 0xff800000",
          f"s_mov_b32 s{SOFF}, s{S_HB}", f"s_add_u32 s{S_T1}, s{S_HB}, {HEAD_BYTES}",
          "L_slow1:",
          f"buffer_load_dwordx2 {vr(V_KT,2)}, v{V_ROW}, {sr(S_K,4)}, s{SOFF} offen offset:32",
          f"buffer_load_dwordx4 {vr(V_KM,4)}, v{V_ROW}, {sr(S_K,4)}, s{SOFF} offen",
          "s_waitcnt vmcnt(0)",
          self.m2b(S0, V_KT, 1), "s_nop 15", "s_nop 1",
          self.m0(S0, V_KM, 1, 0), self.m0(S0, V_KM, 1, 1), "s_nop 11")
        for k in range(8):
            e(f"v_max3_f32 v{MA}, v{S0+2*k}, v{S0+2*k+1}, v{MA}")
        for k in range(8):
            e(f"v_max3_f32 v{MB}, v{S0+16+2*k}, v{S0+16+2*k+1}, v{MB}")
        e(f"s_add_u32 s{SOFF}, s{SOFF}, 1280", f"s_cmp_lt_u32 s{SOFF}, s{S_T1}", "s_cbranch_scc1 L_slow1")
        e(f"v_mov_b32 v{GV}, v{MA}", f"v_mov_b32 v{GV+1}, v{MB}", "s_nop 1",
          f"v_permlane32_swap_b32 v{MA}, v{GV}", f"v_permlane32_swap_b32 v{MB}, v{GV+1}", "s_nop 1",
          f"v_max_f32 v{MA}, v{MA}, v{GV}", f"v_max_f32 v{MB}, v{MB}, v{GV+1}")
        for k in range(16):
            e(f"v_sub_f32 v{BI+k}, 0, v{MA}", f"v_sub_f32 v{BI+16+k}, 0, v{MB}")
        for k in range(32):
            e(f"v_mov_b32 v{V_O+32+k}, 0")
        e(f"v_and_b32 v{GV+1}, 31, v0", f"v_bfe_u32 v{GV}, v0, 5, 1", f"v_mul_u32_u24 v{GV}, 320, v{GV}",
          f"v_lshl_add_u32 v{GV}, v{GV+1}, 1, v{GV}",
          f"v_cmp_eq_u32 vcc, 20, v{GV+1}", f"v_mov_b32 v{GV+2}, 0x3f803f80", "s_nop 0",
          f"v_cndmask_b32 v{GV+2}, 0, v{GV+2}, vcc")
        for k in range(8):
            e(f"v_mov_b32 v{V_VA+k}, v{GV+2}")
        e(f"v_cmp_gt_u32 {sr(S_T2,2)}, 20, v{GV+1}",
          f"s_mov_b32 s{SOFF}, s{S_HB}",
          "L_slow2:",
          f"buffer_load_dwordx2 {vr(V_KT,2)}, v{V_ROW}, {sr(S_K,4)}, s{SOFF} offen offset:32",
          f"buffer_load_dwordx4 {vr(V_KM,4)}, v{V_ROW}, {sr(S_K,4)}, s{SOFF} offen",
          f"s_mov_b64 exec, {sr(S_T2,2)}")
        G = V_S + 64
        for s in range(2):
            for jj in range(8):
                e(f"buffer_load_ushort v{G+8*s+jj}, v{GV}, {sr(S_V,4)}, s{SOFF} offen offset:{640*s+40*jj}")
        e("s_waitcnt vmcnt(0)")
        for k in range(8):
            e(f"v_lshl_or_b32 v{V_VA+k}, v{G+2*k+1}, 16, v{G+2*k}")
        e("s_mov_b64 exec, -1", "s_nop 3",
          self.m2b(S0, V_KT, 1, c=vr(BI, 32)), "s_nop 15", "s_nop 1",
          self.m0(S0, V_KM, 1, 0), self.m0(S0, V_KM, 1, 1), "s_nop 11")
        for k in range(32):
            e(f"v_exp_f32 v{S0+k}, v{S0+k}")
        e("s_nop 1", self.smf(1, 0, V_VA, S0, 0), self.smf(1, 1, V_VA, S0, 0), self.smf(1, 0, V_VB, S0, 1), self.smf(1, 1, V_VB, S0, 1),
          f"s_add_u32 s{SOFF}, s{SOFF}, 1280", f"s_cmp_lt_u32 s{SOFF}, s{S_T1}", "s_cbranch_scc1 L_slow2",
          f"s_mov_b32 s{S_T0}, 0xc0800000", f"s_mov_b32 s{S_T3}, 0x32000000", f"v_mov_b32 v{V_T+6}, 0", "s_nop 11", "s_branch L_final")

    def build(self):
        self.setup_sched(); self.prologue(); self.main(); self.epilogue(); self.slow()
        hdr = open("cdna_kernels/%s.s.ref" % NAME).read().split("; @launch")[0]
        txt = hdr + f"; @launch grid=(256,1,1) block=(512,1,1) lds={LDS_BYTES}\n"
        txt += DOC
        txt += f'.amdgcn_target "amdgcn-amd-amdhsa--gfx950"\n.text\n.globl {NAME}_kernel\n.p2align 8\n.type {NAME}_kernel,@function\n{NAME}_kernel:\n'
        for x in self.L:
            txt += (x if x.endswith(":") or x.startswith(".") else "    " + x) + "\n"
        nv = 256 if self.cfg.maxv else (V_END + 7)//8*8
        txt += f""".section .rodata,"a"
.p2align 6
.amdhsa_kernel {NAME}_kernel
  .amdhsa_next_free_vgpr {nv}
  .amdhsa_next_free_sgpr 80
  .amdhsa_accum_offset {nv}
  .amdhsa_group_segment_fixed_size 0
  .amdhsa_kernarg_size 48
  .amdhsa_user_sgpr_count 2
  .amdhsa_user_sgpr_kernarg_segment_ptr 1
  .amdhsa_system_sgpr_workgroup_id_x 1
.end_amdhsa_kernel
"""
        return txt

DOC = """; Fused attention, one workgroup (8 waves) per (head, 512-query quarter).
"""

def regs_of(tok):
    m = re.fullmatch(r"v\[(\d+):(\d+)\]", tok)
    if m: return set(range(int(m.group(1)), int(m.group(2))+1))
    m = re.fullmatch(r"v(\d+)", tok)
    if m: return {int(m.group(1))}
    return set()
def parse(ins):
    p = ins.split(None, 1)
    op = p[0]; ops = [x.strip() for x in p[1].split(",")] if len(p) > 1 else []
    if ops: ops[-1] = ops[-1].split()[0] if ops[-1] else ops[-1]
    return op, ops
def states(op, ops):
    if op == "s_nop": return int(ops[0]) + 1
    return 1
TRANS = ("v_exp_f32", "v_rcp_f32")
def check(seq, label=""):
    errs = []
    P = [parse(x) for x in seq]
    for i, (op, ops) in enumerate(P):
        is_m = op.startswith("v_mfma") or op.startswith("v_smfmac")
        is_valu = op.startswith("v_") and not is_m
        if not (is_m or is_valu): continue
        D = regs_of(ops[0])
        if op.startswith("v_permlane32_swap"): D |= regs_of(ops[1])
        passes = 16 if "_2b_" in op else 8
        C = (D if op.startswith("v_smfmac") else regs_of(ops[3])) if is_m else set()
        dist = 0
        for k in range(i+1, min(i+40, len(P))):
            op2, ops2 = P[k]
            m2 = op2.startswith("v_mfma") or op2.startswith("v_smfmac")
            valu2 = op2.startswith("v_") and not m2
            mem2 = op2.startswith("ds_") or op2.startswith("buffer_")
            allr = [regs_of(x) for x in ops2]
            need = 0
            if is_m:
                if m2:
                    D2 = allr[0]; A2 = allr[1] | allr[2]
                    C2 = D2 if op2.startswith("v_smfmac") else allr[3]
                    if op2.startswith("v_smfmac"): A2 |= allr[3]
                    p2 = 16 if "_2b_" in op2 else 8
                    if A2 & D: need = max(need, {8: 12, 16: 20}[passes])
                    if C2 & D and not (C2 == D and p2 == passes): need = max(need, {8: 10, 16: 18}[passes])
                    if (D2 & D) and not (C2 & D) : need = max(need, 0)
                elif valu2 or mem2:
                    touched = set().union(*allr) if allr else set()
                    if touched & D: need = max(need, {8: 12, 16: 20}[passes])
                    if valu2 and (allr[0] & C): need = max(need, {8: 7, 16: 15}[passes])
            else:
                if m2:
                    rd = allr[1] | allr[2] | allr[3] | (allr[0] if op2.startswith("v_smfmac") else set())
                    if rd & D: need = 2
                elif valu2:
                    rd = set().union(*allr[1:]) if len(allr) > 1 else set()
                    if op2.startswith("v_permlane"): rd |= allr[0]
                    if op2.startswith(("v_fmac", "v_dot2c")): rd |= allr[0]
                    if rd & D:
                        if op in TRANS and op2 not in TRANS: need = max(need, 1)
                        if op2.startswith("v_permlane"): need = max(need, 2)
                        if op2.startswith(("v_readfirstlane", "v_readlane")): need = max(need, 1)
                        if op.startswith("v_dot2") and not (op2 == op and (allr[3] & D) and not ((allr[1] | allr[2]) & D)): need = max(need, 3)
                if op.startswith(("v_cmp", "v_readfirstlane")) and valu2:
                    dst = ops[0]
                    if any(dst == x for x in ops2[1:]): need = max(need, 2)
                if op.startswith(("v_cmp", "v_readfirstlane")) and op2.startswith("buffer_"):
                    if any(ops[0] == x for x in ops2): need = max(need, 5)
            if need > dist:
                errs.append(f"{label}: [{i}] {seq[i]}  ->  [{k}] {seq[k]} : need {need} have {dist}")
            dist += states(op2, ops2)
            if op2 in ("s_branch", "s_endpgm"): break
    for i, (op, ops) in enumerate(P):
        if op in ("buffer_store_dwordx4", "ds_write_b128"):
            d = regs_of(ops[0] if op.startswith("buffer") else ops[1])
            for k in (i+1, i+2):
                if k < len(P) and P[k][0].startswith("v_") and regs_of(P[k][1][0]) & d: errs.append(f"{label}: store WAR {seq[i]} -> {seq[k]}")
        if op.startswith("s_") and ops and ops[0] == "m0" and i+1 < len(P) and P[i+1][0].startswith("buffer_load") and "lds" in seq[i+1]:
            errs.append(f"{label}: m0 hazard {seq[i]} -> {seq[i+1]}")
    return errs

def main():
    ap = argparse.ArgumentParser()
    ap.add_argument("-o", default="cdna_kernels/%s.s" % NAME)
    ap.add_argument("--stamps", action="store_true")
    ap.add_argument("--p0", type=int, default=2)
    ap.add_argument("--pa", type=int, default=0)
    ap.add_argument("--obar", type=int, default=1)
    ap.add_argument("--pst", action="store_true")
    ap.add_argument("--stflags", default="")
    ap.add_argument("--dummy", type=int, default=0)
    ap.add_argument("--dbg", action="store_true")
    ap.add_argument("--dma_start", type=int, default=0)
    ap.add_argument("--dma_pos", default="1,4")
    ap.add_argument("--bars", default="1,3,9")
    ap.add_argument("--loopbar_slot", type=int, default=27)
    ap.add_argument("--prio", default="3,2,2,1,1,0")
    ap.add_argument("--align", type=int, default=6)
    ap.add_argument("--maxv", action="store_true")
    c = ap.parse_args()
    c.dma_pos = [int(x) for x in c.dma_pos.split(",")]
    c.bars = [int(x) for x in c.bars.split(",")] if c.bars else []
    c.prio = [int(x) for x in c.prio.split(",")] if c.prio else []
    g = Gen(c)
    txt = g.build()
    code = lambda L: [x for x in L if not (x.endswith(":") or x.startswith("."))]
    errs = check(code(g.L), "linear")
    errs += check(code(g.L[g.loop_start:g.loop_end] + g.L[g.loop_start:g.loop_end]), "loop")
    for x in errs: print("HAZARD", x)
    open(c.o, "w").write(txt)
    print("wrote", c.o, "instrs", len(code(g.L)), "vgprs", V_END)
main()
```

```python
import sys, math, struct, re, argparse

NAME = "standalone__fused_io_aware_attn__prompt"
def f32bits(x): return struct.unpack("<I", struct.pack("<f", x))[0]
def vr(b, n=1): return f"v[{b}:{b+n-1}]" if n > 1 else f"v{b}"
def sr(b, n=1): return f"s[{b}:{b+n-1}]" if n > 1 else f"s{b}"

V_TID = 0
V_T = 1
V_O = 8
V_S = V_O + 64
V_Q = V_S + 96
V_QT = V_Q + 16
V_KM = V_QT + 4
V_KT = V_KM + 4
V_VA = V_KT + 2
V_VB = V_VA + 4
V_K1M = V_VB + 4
V_K1T = V_K1M + 4
V_VA2 = V_K1T + 2
V_VB2 = V_VA2 + 4
V_IDX = V_VB2 + 4
V_AK = V_IDX + 1
V_AV = V_AK + 1
V_INC = V_AV + 1
V_ROW = V_INC + 1
V_ROWL = V_ROW + 1
V_DMA = V_ROWL + 1
V_L8 = V_DMA + 1
V_QA = V_L8 + 1
V_END = V_QA + 6

S_Q, S_K, S_V, S_O, S_D = 12, 16, 20, 24, 28
S_W, S_HB, S_Q0, S_Q1, S_K0, S_DOFF, S_C, S_MSK, S_CNT, S_INC, S_T0, S_T1, S_T2, S_T3 = range(32, 46)
S_C2 = 72
S_STAMP = 48
TOTAL_BYTES = 2*32*2048*20*2
HEAD_BYTES = 2048*40
HALF_BYTES = 1024*40
L_ONES = 0
L_V = [4096, 122880]
L_K = [43008, 81920]
L_Q = 143360
LDS_BYTES = 163840

class Gen:
    def __init__(self, cfg):
        self.cfg = cfg
        self.L = []
        self.vm = []
    def e(self, *xs):
        for x in xs:
            if isinstance(x, (list, tuple)): self.e(*x)
            else: self.L.append(x)
    def vmem(self, ins, tag):
        self.e(ins); self.vm.append(tag)
    def vmwait(self, tag):
        i = max(k for k, t in enumerate(self.vm) if t == tag)
        n = len(self.vm) - 1 - i
        return f"s_waitcnt vmcnt({n})"
    def stamp(self, k, pro=False, force=False):
        if self.cfg.est and k == 3 and not force: return
        if self.cfg.pst and k in (3, 4, 5, 6) and not pro: return
        if pro and not self.cfg.pst: return
        if self.cfg.stamps:
            self.e(f"s_memtime {sr(S_STAMP + 2*k, 2)}")

    def dma_round(self, n):
        out = []
        if n >= 2 and n % 2 == 0:
            out.append(f"s_add_u32 m0, m0, 4096")
            out.append(f"s_add_u32 s{S_DOFF}, s{S_DOFF}, 4096")
        off = (n & 1) * 2048
        out.append(("VM", f"buffer_load_dwordx4 v{V_DMA}, {sr(S_D,4)}, s{S_DOFF} offen" + (f" offset:{off}" if off else "") + " lds", f"r{n}"))
        return out
    def emit_items(self, items):
        for it in items:
            if isinstance(it, tuple) and it[0] == "VM": self.vmem(it[1], it[2])
            elif callable(it): self.e(it())
            else: self.e(it)

    def qconv(self, r, t0, t1):
        return [f"v_lshlrev_b32 v{t0}, 16, v{r}",
                f"v_and_b32 v{t1}, s{S_MSK}, v{r}",
                f"v_pk_mul_f32 {vr(t0,2)}, {vr(t0,2)}, {sr(S_C2,2)}",
                f"v_cvt_pk_bf16_f32 v{r}, v{t0}, v{t1}"]
    def qconv_many(self, regs):
        out = []
        for i in range(0, len(regs), 2):
            if i + 1 == len(regs):
                out += self.qconv(regs[i], V_T+1, V_T+2); break
            a = self.qconv(regs[i], V_T+1, V_T+2); b = self.qconv(regs[i+1], V_T+3, V_T+4)
            for x, y in zip(a, b): out += [x, y]
        return out

    def m2b(self, sbuf, kt, pair, c="0"):
        return f"v_mfma_f32_32x32x4_2b_bf16 {vr(sbuf,32)}, {vr(kt,2)}, {vr(V_QT+2*pair,2)}, {c} cbsz:1 abid:0"
    def m0(self, sbuf, km, pair, i):
        d = sbuf + 16*i
        return f"v_mfma_f32_32x32x16_bf16 {vr(d,16)}, {vr(km,4)}, {vr(V_Q+8*pair+4*i,4)}, {vr(d,16)}"
    def smf(self, pair, i, vreg, sbuf, half):
        return f"v_smfmac_f32_32x32x32_bf16 {vr(V_O+32*pair+16*i,16)}, {vr(vreg,4)}, {vr(sbuf+16*i+8*half,8)}, v{V_IDX}"

    def slot(self, j, km=V_KM, kt=V_KT, koff=None, voff=None, do_qk=True, do_pv=True, waits=True,
             extras=None, prio=None, kload=True, vload=True, pn=None, pp=None, va=V_VA, vb=V_VB, late_m2b=False):
        extras = extras or {}
        sc = V_S + 32*(j % 3); sn = V_S + 32*((j+1) % 3); sp = V_S + 32*((j-1) % 3)
        if pn is None: pn = (j+1) & 1
        if pp is None: pp = (j-1) & 1
        even = (j & 1) == 0
        ex = [f"v_exp_f32 v{sc+i}, v{sc+i}" for i in range(32)]
        def ds(kind):
            if not even: return []
            if kind == 'kt': return [f"ds_read_b64 {vr(V_KT,2)}, v{V_AK} offset:{koff+32}"] if kload else []
            if kind == 'km': return [f"ds_read_b64 {vr(V_KM,2)}, v{V_AK} offset:{koff}", f"ds_read_b64 {vr(V_KM+2,2)}, v{V_AK} offset:{koff+8}"] if kload else []
            if kind == 'va': return [f"ds_read_b64_tr_b16 {vr(V_VA,2)}, v{V_AV} offset:{voff}", f"ds_read_b64_tr_b16 {vr(V_VA+2,2)}, v{V_AV} offset:{voff+160}"] if vload else []
            if kind == 'vb': return [f"ds_read_b64_tr_b16 {vr(V_VB,2)}, v{V_AV} offset:{voff+640}", f"ds_read_b64_tr_b16 {vr(V_VB+2,2)}, v{V_AV} offset:{voff+800}"] if vload else []
        def w(n):
            if even or not waits: return []
            if isinstance(waits, dict): return [f"s_waitcnt lgkmcnt({waits[n]})"] if n in waits else []
            return [f"s_waitcnt lgkmcnt({n})"]
        X = lambda k: extras.get(k, [])
        qk = lambda x: [x] if do_qk else []
        pv = lambda x: [x] if do_pv else []
        seq = []
        if prio is not None: seq.append(f"s_setprio {prio}")
        if late_m2b:
            seq += X(0) + ex[0:6] + w(6) + qk(self.m2b(sn, kt, pn)) + ex[6:10] + X(1)
            seq += w(4) + pv(self.smf(pp, 0, va, sp, 0)) + X(2) + ex[10:14]
            seq += pv(self.smf(pp, 1, va, sp, 0)) + ex[14:18]
            seq += w(0) + pv(self.smf(pp, 0, vb, sp, 1)) + X(3) + ex[18:22]
            seq += w(2) + qk(self.m0(sn, km, pn, 0)) + ex[22:25]
            seq += qk(self.m0(sn, km, pn, 1)) + X(4) + ex[25:28]
            seq += pv(self.smf(pp, 1, vb, sp, 1)) + ex[28:32] + X(5)
        else:
            M2, MA, MB = qk(self.m2b(sn, kt, pn)), qk(self.m0(sn, km, pn, 0)), qk(self.m0(sn, km, pn, 1))
            S1, S2 = pv(self.smf(pp, 0, va, sp, 0)), pv(self.smf(pp, 1, va, sp, 0))
            S3, S4 = pv(self.smf(pp, 0, vb, sp, 1)), pv(self.smf(pp, 1, vb, sp, 1))
            pat = self.cfg.pat
            if pat == "A":
                seq += X(0) + w(6) + M2 + ds('kt') + ex[0:4] + X(1) + ex[4:8] + w(4) + S1 + X(2) + ex[8:12] + S2 + ds('va') + ex[12:16]
                seq += w(2) + MA + X(3) + ex[16:20] + MB + ds('km') + ex[20:24] + w(0) + S3 + X(4) + ex[24:28] + S4 + ds('vb') + ex[28:32] + X(5)
            elif pat == "B":
                va_, km_, vb_ = ds('va') or [None, None], ds('km') or [None, None], ds('vb') or [None, None]
                f = lambda x: [x] if x else []
                w2 = lambda n, m: ([f"s_waitcnt lgkmcnt({m})"] if (not even and waits is True) else w(n))
                seq += X(0) + w2(6, 2) + M2 + ds('kt') + ex[0:4] + X(1) + ex[4:8] + (w(4) if waits is not True else []) + S1 + X(2) + ex[8:12] + S2 + f(va_[0]) + ex[12:14] + f(va_[1]) + ex[14:16]
                seq += (w(2) if waits is not True else []) + MA + X(3) + ex[16:20] + MB + f(km_[0]) + ex[20:22] + f(km_[1]) + ex[22:24] + w(0) + S3 + X(4) + ex[24:28] + S4 + f(vb_[0]) + ex[28:30] + f(vb_[1]) + ex[30:32] + X(5)
            elif pat == "C":
                seq += X(0) + w(6) + M2 + ex[0:4] + X(1) + ex[4:8] + ds('kt') + w(4) + S1 + X(2) + ex[8:12] + S2 + ex[12:16] + ds('va')
                seq += w(2) + MA + X(3) + ex[16:20] + MB + ex[20:24] + ds('km') + w(0) + S3 + X(4) + ex[24:28] + S4 + ex[28:32] + ds('vb') + X(5)
            elif pat == "D":
                seq += X(0) + w(6) + M2 + ds('kt') + ex[0:4] + X(1) + ex[4:9] + w(4) + S1 + X(2) + ex[9:13] + S2 + ds('va') + ex[13:17]
                seq += w(2) + MA + X(3) + ex[17:21] + MB + ds('km') + ex[21:25] + w(0) + S3 + X(4) + ex[25:29] + S4 + ds('vb') + ex[29:32] + X(5)
            elif pat == "E":
                w2 = lambda n, m: ([f"s_waitcnt lgkmcnt({m})"] if (not even and waits is True) else w(n))
                seq += X(0) + w2(6, 2) + M2 + ds('kt') + ex[0:4] + X(1) + ex[4:8] + (w(4) if waits is not True else []) + S1 + X(2) + ex[8:12] + S2 + ds('va') + ex[12:16]
                seq += (w(2) if waits is not True else []) + MA + X(3) + ex[16:20] + MB + ds('km') + ex[20:24] + w(0) + S3 + X(4) + ex[24:28] + S4 + ds('vb') + ex[28:32] + X(5)
        self.emit_items(seq)

    def prologue(self):
        c = self.cfg
        e = self.e
        vm = self.vmem
        scale = math.log2(math.e) / math.sqrt(20.0)
        QL = V_VA2
        QL1 = V_Q + 8
        A0, A1, A2, W16, W4, L4 = range(V_QA, V_QA + 6)
        self.QL1 = QL1
        e(f"s_cmp_ge_u32 s2, 256",
          f"s_cbranch_scc1 L_end",
          f"s_load_dwordx8 s[4:11], s[0:1], 0")
        self.stamp(0)
        if c.stamps: e("s_memrealtime s[70:71]")
        e(f"v_lshrrev_b32 v1, 6, v0",
          f"v_and_b32 v2, 63, v0",
          f"v_readfirstlane_b32 s{S_W}, v1",
          f"s_and_b32 s{S_T0}, s2, 7",
          f"s_lshl_b32 s{S_T0}, s{S_T0}, 3",
          f"s_lshr_b32 s{S_T1}, s2, 5",
          f"s_add_u32 s{S_T0}, s{S_T0}, s{S_T1}",
          f"s_mul_i32 s{S_HB}, s{S_T0}, {HEAD_BYTES}",
          f"s_bfe_u32 s{S_T0}, s2, 0x20003",
          f"s_mul_i32 s{S_Q1}, s{S_T0}, 20480",
          f"s_add_u32 s{S_Q1}, s{S_Q1}, s{S_HB}",
          f"v_lshlrev_b32 v{V_DMA}, 4, v2",
          f"v_lshlrev_b32 v{L4}, 2, v2",
          f"s_and_b32 s{S_T1}, s{S_W}, 3",
          f"s_mul_i32 s{S_Q0}, s{S_T1}, 5120",
          f"s_lshr_b32 s{S_T2}, s{S_W}, 2",
          f"s_mul_i32 s{S_K0}, s{S_T2}, 1280",
          f"s_add_u32 s{S_K0}, s{S_K0}, s{S_Q0}",
          f"s_add_u32 s{S_Q1}, s{S_Q1}, s{S_K0}",
          f"s_and_b32 s{S_T0}, s{S_W}, 1",
          f"s_lshr_b32 s{S_T3}, s{S_W}, 1",
          f"s_mul_i32 s{S_T3}, s{S_T3}, 640",
          f"s_mul_i32 s{S_DOFF}, s{S_T0}, {HALF_BYTES}",
          f"s_add_u32 s{S_DOFF}, s{S_DOFF}, s{S_HB}",
          f"s_add_u32 s{S_C}, s{S_DOFF}, s{S_T3}",
          f"s_mul_i32 s{S_T1}, s{S_T0}, {L_K[1]-L_K[0]}",
          f"s_add_u32 s{S_T1}, s{S_T1}, {L_K[0]}",
          f"s_add_u32 m0, s{S_T1}, s{S_T3}",
          f"s_mov_b32 s{S_Q+2}, {TOTAL_BYTES}",
          f"s_mov_b32 s{S_Q+3}, 0x20000",
          f"s_mov_b32 s{S_K+2}, {TOTAL_BYTES}",
          f"s_mov_b32 s{S_K+3}, 0x20000",
          f"s_waitcnt lgkmcnt(0)",
          f"s_mov_b32 s{S_Q}, s4",
          f"s_mov_b32 s{S_Q+1}, s5",
          f"s_mov_b32 s{S_K}, s6",
          f"s_mov_b32 s{S_K+1}, s7")
        vm(f"buffer_load_dwordx4 {vr(QL,4)}, v{V_DMA}, {sr(S_Q,4)}, s{S_Q1} offen", "q0a")
        vm(f"buffer_load_dword v{QL+4}, v{L4}, {sr(S_Q,4)}, s{S_Q1} offen offset:1024", "q0b")
        e("s_mov_b32 exec_hi, 0xff")
        vm(f"buffer_load_dwordx4 v{V_DMA}, {sr(S_K,4)}, s{S_C} offen lds", "k01")
        e("s_mov_b32 exec_hi, -1")
        e(f"s_mul_i32 s{S_T0}, s{S_T0}, {L_V[1]-L_V[0]}",
          f"s_add_u32 s{S_T0}, s{S_T0}, {L_V[0]}",
          f"s_add_u32 s{S_INC}, s{S_T0}, s{S_T3}",
          f"s_mov_b32 s{S_V}, s8", f"s_mov_b32 s{S_V+1}, s9", f"s_mov_b32 s{S_V+2}, {TOTAL_BYTES}", f"s_mov_b32 s{S_V+3}, 0x20000",
          f"s_lshl_b32 s{S_T3}, s{S_T2}, 10",
          f"s_add_u32 s{S_DOFF}, s{S_DOFF}, s{S_T3}",
          f"s_bitcmp1_b32 s{S_W}, 1",
          f"s_cselect_b32 s{S_T0}, s{S_T0}, s{S_T1}",
          f"s_cselect_b32 s{S_D}, s8, s6",
          f"s_cselect_b32 s{S_D+1}, s9, s7",
          f"s_add_u32 s{S_CNT}, s{S_T0}, s{S_T3}",
          f"s_mov_b32 s{S_D+2}, {TOTAL_BYTES}",
          f"s_mov_b32 s{S_D+3}, 0x20000",
          f"s_mov_b32 m0, s{S_INC}")
        def batch2():
            e("s_mov_b32 exec_hi, 0xff")
            vm(f"buffer_load_dwordx4 v{V_DMA}, {sr(S_V,4)}, s{S_C} offen lds", "v01")
            e("s_mov_b32 exec_hi, -1")
            vm(f"buffer_load_dwordx4 {vr(QL1,4)}, v{V_DMA}, {sr(S_Q,4)}, s{S_Q1} offen offset:2560", "q1a")
            vm(f"buffer_load_dword v{QL1+4}, v{L4}, {sr(S_Q,4)}, s{S_Q1} offen offset:3584", "q1b")
            e(f"s_mov_b32 m0, s{S_CNT}", f"s_movk_i32 s{S_INC}, 3840")
        def batch3():
            for n in range(1, c.p0 + 1):
                self.emit_items(self.dma_round(n))
        if c.b2 == 0: batch2()
        e(f"s_mov_b32 s{S_C2}, 0x{f32bits(scale):08x}", f"s_mov_b32 s{S_C2+1}, 0x{f32bits(scale):08x}",
          f"s_mov_b32 s{S_MSK}, 0xffff0000",
          f"s_mov_b32 s{S_O}, s10", f"s_mov_b32 s{S_O+1}, s11", f"s_mov_b32 s{S_O+2}, {TOTAL_BYTES}", f"s_mov_b32 s{S_O+3}, 0x20000",
          f"v_mov_b32 v6, 0", f"v_mov_b32 v7, 0",
          f"v_and_b32 v1, 1, v0",
          f"v_cmp_eq_u32 vcc, 0, v1",
          f"v_mfma_f32_32x32x4_2b_bf16 {vr(V_O,32)}, v[6:7], v[6:7], 0",
          f"v_mfma_f32_32x32x4_2b_bf16 {vr(V_O+32,32)}, v[6:7], v[6:7], 0",
          f"v_mov_b32 v4, 0x3f80",
          f"v_lshlrev_b32 v1, 3, v0",
          f"v_mov_b32 v5, 0",
          f"v_cndmask_b32 v4, 0, v4, vcc",
          f"v_mov_b32 v{V_IDX}, 0xdddd",
          f"ds_write_b64 v1, v[4:5]",
          f"v_lshlrev_b32 v{V_L8}, 3, v2",
          f"v_and_b32 v3, 31, v0",
          f"v_mul_u32_u24 v3, 40, v3",
          f"v_bfe_u32 v4, v0, 5, 1",
          f"v_lshl_add_u32 v{V_ROW}, v4, 4, v3",
          f"v_mul_u32_u24 v{V_ROWL}, 40, v2",
          f"s_mul_i32 s{S_T0}, s{S_T2}, {L_K[1]-L_K[0]}",
          f"s_add_u32 s{S_T0}, s{S_T0}, {L_K[0]}",
          f"v_add_u32 v{V_AK}, s{S_T0}, v{V_ROW}",
          f"s_add_u32 s{S_T0}, s{S_K0}, {L_Q}",
          f"v_add_u32 v{W16}, s{S_T0}, v{V_DMA}",
          f"v_add_u32 v{W4}, s{S_T0}, v{L4}",
          f"v_add_u32 v{A0}, s{S_T0}, v{V_ROW}",
          f"s_lshl_b32 s{S_T1}, s{S_Q0}, 1",
          f"s_sub_u32 s{S_T0}, s{S_T1}, s{S_K0}",
          f"s_add_u32 s{S_T0}, s{S_T0}, {L_Q + 1280}",
          f"v_add_u32 v{A1}, s{S_T0}, v{V_ROW}",
          f"s_lshl_b32 s{S_T1}, s{S_T2}, 5",
          f"v_xor_b32 v{A2}, s{S_T1}, v2",
          f"v_mul_u32_u24 v{A2}, 40, v{A2}",
          f"s_add_u32 s{S_T0}, s{S_Q0}, {L_Q}",
          f"v_add_u32 v{A2}, s{S_T0}, v{A2}",
          f"s_mul_i32 s{S_T0}, s{S_T2}, {L_V[1]-L_V[0]}",
          f"s_add_u32 s{S_T0}, s{S_T0}, {L_V[0]-1280}",
          f"v_bfe_u32 v1, v0, 2, 2",
          f"v_lshl_add_u32 v1, v4, 3, v1",
          f"v_mul_u32_u24 v1, 40, v1",
          f"v_and_b32 v2, 19, v0",
          f"v_bfe_u32 v3, v0, 4, 1",
          f"v_and_b32 v5, 3, v0",
          f"v_lshlrev_b32 v3, 5, v3",
          f"v_lshl_add_u32 v3, v5, 3, v3",
          f"v_add3_u32 v1, v1, v3, s{S_T0}",
          f"v_lshlrev_b32 v4, 6, v4",
          f"v_lshrrev_b32 v5, 1, v5",
          f"v_lshl_add_u32 v4, v5, 3, v4",
          f"v_add_u32 v4, 160, v4",
          f"v_cmp_lt_u32 vcc, 16, v2",
          f"v_mov_b32 v3, 3840",
          f"s_nop 0",
          f"v_cndmask_b32 v{V_AV}, v1, v4, vcc",
          f"v_cndmask_b32 v{V_INC}, v3, 0, vcc")
        if c.b2 == 1:
            if c.obar: e("s_barrier")
            batch2()
        if c.b3 == 1: batch3()
        self.stamp(1)
        e(self.vmwait("q0a"))
        self.stamp(3, True)
        if c.b2 == 2: batch2()
        if c.b3 == 2: batch3()
        e(self.qconv_many(list(range(QL, QL+4))))
        e(f"ds_write_b128 v{W16}, {vr(QL,4)}")
        e(self.vmwait("q0b"))
        self.stamp(4, True)
        e(self.qconv_many([QL+4]))
        e(f"ds_write_b32 v{W4}, v{QL+4} offset:1024")
        e("s_waitcnt lgkmcnt(0)")
        self.stamp(5, True)
        e(self.vmwait("k01"))
        self.stamp(6, True)
        e("s_barrier")
        self.stamp(2)
        s0 = V_S
        rd4 = self.rd4
        e(f"ds_read_b64 {vr(V_QT,2)}, v{A2} offset:32",
          f"ds_read_b64 {vr(V_KT,2)}, v{V_AK} offset:32",
          rd4(V_KM, V_AK, 0), rd4(V_Q, A0, 0), rd4(V_Q+4, A1, 0),
          f"ds_read_b64 {vr(V_K1T,2)}, v{V_AK} offset:{1280+32}",
          rd4(V_K1M, V_AK, 1280))
        if c.b3 == 3: batch3()
        e("s_waitcnt lgkmcnt(9)",
          self.m2b(s0, V_KT, 0),
          "s_nop 15",
          "s_waitcnt lgkmcnt(3)", "s_nop 0",
          self.m0(s0, V_KM, 0, 0), self.m0(s0, V_KM, 0, 1),
          "s_nop 8", "s_waitcnt lgkmcnt(0)")

    def rd4(self, dst, a, off):
        return [f"ds_read_b64 {vr(dst,2)}, v{a} offset:{off}", f"ds_read_b64 {vr(dst+2,2)}, v{a} offset:{off+8}"]

    def need_round(self, last_even_slot):
        t = last_even_slot // 2
        need = min(1280*(t+2), 40960)
        return (need + 2047)//2048 - 1

    def setup_sched(self):
        c = self.cfg
        bars = sorted(c.bars)
        allb = [0] + bars + ([c.loopbar_slot] if c.loopbar_slot else [])
        self.nxt_of = {}
        for a, b in zip(allb, allb[1:] + [None]): self.nxt_of[a] = b
    def barrier_items(self, slot):
        nxt = self.nxt_of[slot]
        if nxt is None: r = 19
        else:
            le = nxt - 1 if (nxt - 1) % 2 == 0 else nxt - 2
            r = self.need_round(le)
        return [lambda r=r: self.vmwait(f"r{r}"), "s_barrier"]

    def main(self):
        c = self.cfg
        e = self.e
        NP = 9
        rounds = list(range(c.p0 + 1, 20))
        pos_cycle = c.dma_pos
        ext = {j: {} for j in range(NP)}
        j = c.dma_start
        k = 0
        bars = sorted(c.bars)
        while rounds:
            n = rounds.pop(0)
            p = pos_cycle[k % len(pos_cycle)]
            assert n < 10 or j >= min(b for b in bars if b >= 2), "round %d too early" % n
            ext[j].setdefault(p, []).extend(self.dma_round(n))
            k += 1
            if k % len(pos_cycle) == 0: j += 1
            assert j < NP or not rounds, "DMA rounds do not fit in the peeled slots"
        prio = lambda j: (c.prio[j % len(c.prio)] if c.prio else None)
        A0, A1, A2, W16, W4, L4 = range(V_QA, V_QA + 6)
        QL1 = self.QL1
        def vrd(a, b, off):
            return [f"ds_read_b64_tr_b16 {vr(a,2)}, v{V_AV} offset:{off}", f"ds_read_b64_tr_b16 {vr(a+2,2)}, v{V_AV} offset:{off+160}",
                    f"ds_read_b64_tr_b16 {vr(b,2)}, v{V_AV} offset:{off+640}", f"ds_read_b64_tr_b16 {vr(b+2,2)}, v{V_AV} offset:{off+800}"]
        for j in range(NP):
            x = ext[j]
            if j in bars:
                x.setdefault(0, [])
                x[0] = self.barrier_items(j) + x[0]
            t = j // 2
            if j in (2, 8):
                x.setdefault(5, []); x[5] = x[5] + [f"v_add_u32 v{V_AV}, v{V_INC}, v{V_AV}"]
            kw = {}
            if j == 0:
                x.setdefault(5, [])
                x[5] = x[5] + [lambda: self.vmwait("q1a")] + self.qconv_many(list(range(QL1, QL1+4))) + [f"ds_write_b128 v{W16}, {vr(QL1,4)} offset:2560",
                        lambda: self.vmwait("q1b")] + self.qconv_many([QL1+4]) + [f"ds_write_b32 v{W4}, v{QL1+4} offset:3584", "s_waitcnt lgkmcnt(0)", "s_barrier",
                        f"ds_read_b64 {vr(V_QT+2,2)}, v{A2} offset:{2560+32}"] + vrd(V_VA, V_VB, 1280) + self.rd4(V_Q+8, A0, 2560) + self.rd4(V_Q+12, A1, 2560) + vrd(V_VA2, V_VB2, 2560)
                x[2] = x.get(2, []) + ["s_nop 1"]
                kw = dict(km=V_K1M, kt=V_K1T, pn=0, do_pv=False, kload=False, vload=False)
            elif j == 1: kw = dict(pn=1, pp=0, late_m2b=True, waits={6: 12, 4: 10, 0: 8, 2: 4})
            elif j == 2:
                x.setdefault(2, []); x[0] = x.get(0, []) + ["s_waitcnt lgkmcnt(0)"]
                kw = dict(km=V_K1M, kt=V_K1T, pn=1, pp=0, va=V_VA2, vb=V_VB2, vload=False)
            elif j == 3: kw = dict(pn=0, pp=1, waits={6: 2, 2: 0})
            elif j == 4: kw = dict(va=V_VA2, vb=V_VB2)
            self.slot(j, koff=(t+1)*1280, voff=(t-2)*1280, extras=x, prio=prio(j), **kw)
            if j == 0: self.stamp(3)
        self.stamp(4)
        if 9 in bars:
            self.emit_items(self.barrier_items(9))
        e(f"s_mov_b32 s{S_CNT}, 9")
        if c.align: e(f".p2align {c.align}")
        e("L_loop:")
        self.loop_start = len(self.L)
        for jj in range(6):
            j = 9 + jj
            t = j // 2
            x = {}
            if jj == 0 and c.loopbar_slot:
                it = (c.loopbar_slot - 9)//6
                x[0] = [f"s_cmp_eq_u32 s{S_CNT}, {9 - it}", "s_cbranch_scc1 L_bar", "L_bar_ret:"]
            if jj == 5:
                x[4] = [f"s_sub_u32 s{S_CNT}, s{S_CNT}, 1"]
                x[5] = [f"v_add_u32 v{V_AK}, s{S_INC}, v{V_AK}", f"v_add_u32 v{V_AV}, v{V_INC}, v{V_AV}",
                        f"s_cmp_lg_u32 s{S_CNT}, 0", "s_cbranch_scc1 L_loop"]
            self.slot(j, koff=(t+1)*1280, voff=(t-5)*1280, extras=x, prio=prio(j))
        self.loop_end = len(self.L)
        if c.est: self.stamp(3, force=True)
        sc = V_S + 32*(63 % 3); sp = V_S + 32*(62 % 3)
        ex = [f"v_exp_f32 v{sc+i}, v{sc+i}" for i in range(32)]
        A = V_T
        R = V_S + 32
        if c.prio: e(f"s_setprio {c.prio[63 % len(c.prio)]}")
        wr = [f"ds_write_b128 v{A}, {vr(V_O+16+32*i+4*k,4)} offset:{(3*i+k)*1024}" for i in range(2) for k in range(3)]
        rd = [f"ds_read_b128 {vr(R+12*i+4*k,4)}, v{A+1} offset:{(3*i+k)*1024}" for i in range(2) for k in (2, 0, 1)]
        e("s_waitcnt lgkmcnt(4)", self.smf(0, 1, V_VA, sp, 0),
          f"s_lshr_b32 s{S_T0}, s{S_W}, 1", f"s_mul_i32 s{S_T0}, s{S_T0}, 38912", f"s_and_b32 s{S_T1}, s{S_W}, 1",
          ex[16:19],
          "s_waitcnt lgkmcnt(0)", self.smf(0, 1, V_VB, sp, 1),
          f"s_mul_i32 s{S_T1}, s{S_T1}, 6144", f"s_add_u32 s{S_T0}, s{S_T0}, s{S_T1}", f"s_add_u32 s{S_T0}, s{S_T0}, 6144",
          ex[19:22], self.smf(0, 0, V_VA, sp, 0),
          f"s_add_u32 s{S_T1}, s{S_T0}, {2*38912}", f"s_sub_u32 s{S_T2}, s{S_T0}, {2*38912}",
          f"s_cmp_lt_u32 s{S_W}, 4", f"s_cselect_b32 s{S_T1}, s{S_T1}, s{S_T2}",
          f"v_add_u32 v{A}, s{S_T0}, v{V_DMA}",
          ex[22:26], self.smf(1, 1, V_VA, sc, 0))
        if c.loopbar_slot < 27: e("s_barrier")
        e(wr[0], ex[26:27], wr[1], ex[27:28], wr[2], ex[28:30], self.smf(0, 0, V_VB, sp, 1), ex[30:32], ex[0:2], self.smf(1, 1, V_VB, sc, 1),
          ex[2:4], f"v_add_u32 v{A+1}, s{S_T1}, v{V_DMA}",
          f"v_bfe_u32 v{A+4}, v0, 5, 1", f"v_lshlrev_b32 v{A+4}, 3, v{A+4}", f"v_sub_u32 v{A+4}, v{V_ROW}, v{A+4}",
          ex[4:6],
          f"v_add_u32 v{A+4}, s{S_T1}, v{A+4}", f"v_add_u32 v{A+5}, s{S_T1}, v{V_ROWL}",
          ex[6:10], wr[3], wr[4], wr[5], self.smf(1, 0, V_VA, sc, 0),
          f"v_add_u32 v{A}, s{S_T1}, v{V_L8}",
          f"v_cmp_lt_u32 vcc, 255, v{V_DMA}", f"v_add_u32 v{V_QA}, 1280, v{V_DMA}",
          "s_waitcnt lgkmcnt(0)", "s_barrier", rd[0:3], ex[10:13], rd[3:6], ex[13:16],
          f"v_cndmask_b32 v{V_QA}, v{V_DMA}, v{V_QA}, vcc", "s_nop 0", self.smf(1, 0, V_VB, sc, 1))
        self.stamp(5)

    def epilogue(self):
        c = self.cfg
        e = self.e
        R = V_S + 32
        A = V_T
        KO = V_O
        LA, LB, CK = V_T+2, V_T+3, V_T+6
        RA, RB = V_KM, V_KM+2
        TA, TB = V_VA, V_VA+1
        P = V_S + 64
        add = lambda i, k: f"v_pk_add_f32 {vr(KO+32*i+k,2)}, {vr(KO+32*i+k,2)}, {vr(R+12*i+k,2)}"
        e("s_waitcnt lgkmcnt(3)", [add(0, k) for k in (8, 10, 0, 2, 4, 6)],
          f"s_mov_b32 s{S_T0}, 0xc0800000", f"s_mov_b32 s{S_T3}, 0x32000000", f"v_mov_b32 v{CK}, 0", "s_nop 0",
          "s_waitcnt lgkmcnt(0)", [add(1, k) for k in (8, 10, 0, 2, 4, 6)])
        self.stamp(6)
        e("L_final:")
        mul = lambda i, r, k: f"v_pk_mul_f32 {vr(KO+32*i+k,2)}, {vr(KO+32*i+k,2)}, {vr(r,2)} op_sel_hi:[1,0]"
        cvt = lambda i, k: f"v_cvt_pk_bf16_f32 v{P+6*i+k}, v{KO+32*i+2*k}, v{KO+32*i+2*k+1}"
        e(f"v_mov_b32 v{LA}, v{KO+8}", f"v_mov_b32 v{LB}, v{KO+32+8}", "s_nop 0",
          f"v_permlane32_swap_b32 v{KO+8}, v{LA}", f"v_permlane32_swap_b32 v{KO+32+8}, v{LB}",
          f"v_rcp_f32 v{RA}, v{LA}", f"v_rcp_f32 v{RB}, v{LB}",
          f"v_add_u32 v{TA}, s{S_T0}, v{LA}", f"v_add_u32 v{TB}, s{S_T0}, v{LB}",
          [mul(0, RA, k) for k in range(0, 12, 2)], f"v_max_u32 v{TA}, v{TA}, v{TB}",
          [cvt(0, k) for k in range(4)],
          f"ds_write_b64 v{A+4}, {vr(P,2)}", f"ds_write_b64 v{A+4}, {vr(P+2,2)} offset:16",
          [cvt(0, k) for k in (4, 5)],
          [mul(1, RB, k) for k in (8, 10, 0, 2, 4, 6)], f"v_cmp_gt_u32 {sr(S_STAMP-2,2)}, s{S_T3}, v{TA}",
          [cvt(1, k) for k in (4, 5, 0, 1, 2, 3)],
          f"v_permlane32_swap_b32 v{P+4}, v{P+10}", f"v_permlane32_swap_b32 v{P+5}, v{P+11}",
          f"ds_write_b64 v{A+4}, {vr(P+6,2)} offset:1280", f"ds_write_b64 v{A+4}, {vr(P+8,2)} offset:{1280+16}",
          f"ds_write_b64 v{A+5}, {vr(P+4,2)} offset:32")
        for k in range(5):
            e(f"v_dot2_f32_bf16 v{CK}, v{P+k}, 0, v{CK}")
        O2 = V_S + 80
        e("s_waitcnt lgkmcnt(0)",
          f"ds_read_b128 {vr(O2,4)}, v{A+1}", f"ds_read_b128 {vr(O2+4,4)}, v{A+1} offset:1024", f"ds_read_b64 {vr(O2+8,2)}, v{A} offset:2048")
        for k in range(5, 10):
            e(f"v_dot2_f32_bf16 v{CK}, v{P+k}, 0, v{CK}")
        e("s_nop 2",
          f"v_cmp_o_f32 vcc, v{CK}, v{CK}",
          f"s_nop 1",
          f"s_and_b64 vcc, vcc, {sr(S_STAMP-2,2)}",
          f"s_andn2_b64 vcc, exec, vcc",
          f"s_cbranch_scc1 L_slow",
          "L_store:")
        fl = (" " + c.stflags) if c.stflags else ""
        e("s_waitcnt lgkmcnt(2)", f"buffer_store_dwordx4 {vr(O2,4)}, v{V_DMA}, {sr(S_O,4)}, s{S_Q1} offen{fl}",
          "s_waitcnt lgkmcnt(1)", f"buffer_store_dwordx4 {vr(O2+4,4)}, v{V_QA}, {sr(S_O,4)}, s{S_Q1} offen offset:1024{fl}",
          "s_waitcnt lgkmcnt(0)", f"buffer_store_dwordx2 {vr(O2+8,2)}, v{V_L8}, {sr(S_O,4)}, s{S_Q1} offen offset:{2048+1280}{fl}")
        if c.dummy:
            for _ in range(5): e(f"v_subrev_u32 v{V_AK}, s{S_INC}, v{V_AK}", f"v_sub_u32 v{V_AV}, v{V_AV}, v{V_INC}")
            e("s_waitcnt vmcnt(0)", "s_barrier", f"s_mov_b32 s{S_CNT}, {c.dummy}", )
            self.stamp(7)
            e(".p2align 6", "L_dummy:")
            for jj in range(6):
                j = 9 + jj; t = j // 2; x = {}
                if jj == 0 and c.dummychk: x[0] = [f"s_cmp_eq_u32 s{S_CNT}, 1000", "s_cbranch_scc1 L_bar"]
                if jj == 5:
                    x[4] = [f"s_sub_u32 s{S_CNT}, s{S_CNT}, 1"]
                    x[5] = [f"v_add_u32 v{V_QA+1}, s{S_INC}, v{V_QA+1}", f"v_add_u32 v{V_QA+2}, v{V_INC}, v{V_QA+2}", f"s_cmp_lg_u32 s{S_CNT}, 0", "s_cbranch_scc1 L_dummy"]
                self.slot(j, koff=(t+1)*1280, voff=(t-5)*1280, extras=x, prio=c.prio[j % len(c.prio)])
        if c.stamps:
            if not c.dummy: self.stamp(7)
            e("s_waitcnt vmcnt(0)")
            self.stamp(8)
            if c.dbg:
                e("s_load_dwordx2 s[4:5], s[0:1], 32", "s_memrealtime s[10:11]", "s_waitcnt lgkmcnt(0)",
                  "s_mov_b32 s6, 256", "s_mov_b32 s7, 0x20000", "v_mov_b32 v1, 0", "s_mov_b64 exec, 1",
                  "s_not_b32 s8, s70", "v_mov_b32 v2, s8", "buffer_atomic_umax v2, v1, s[4:7], 0 offen",
                  "v_mov_b32 v3, s10", "buffer_atomic_umax v3, v1, s[4:7], 0 offen offset:4",
                  "v_mov_b32 v4, s70", "buffer_atomic_umax v4, v1, s[4:7], 0 offen offset:8",
                  "s_not_b32 s8, s10", "v_mov_b32 v5, s8", "buffer_atomic_umax v5, v1, s[4:7], 0 offen offset:12")
                for k in range(1, 9):
                    e(f"s_sub_u32 s8, s{S_STAMP+2*k}, s{S_STAMP}", f"v_mov_b32 v{8+k}, s8", f"buffer_atomic_umax v{8+k}, v1, s[4:7], 0 offen offset:{12+4*k}")
                e(f"s_sub_u32 s8, s10, s70", f"v_mov_b32 v6, s8", f"buffer_atomic_umax v6, v1, s[4:7], 0 offen offset:48")
                e("s_endpgm")
            e("s_load_dwordx2 s[4:5], s[0:1], 40", "s_waitcnt lgkmcnt(0)",
              "s_mov_b32 s6, 0x1000000", "s_mov_b32 s7, 0x20000",
              f"s_lshl_b32 s8, s2, 3", f"s_add_u32 s8, s8, s{S_W}", "s_lshl_b32 s8, s8, 7", "v_mov_b32 v1, 0")
            for k in range(9):
                e(f"v_mov_b32 v2, s{S_STAMP+2*k}", f"v_mov_b32 v3, s{S_STAMP+2*k+1}", f"buffer_store_dwordx2 v[2:3], v1, s[4:7], s8 offen offset:{8*k}", "s_nop 1")
            e("s_memrealtime s[10:11]", "s_waitcnt lgkmcnt(0)", "v_mov_b32 v2, s10", "v_mov_b32 v3, s11", f"buffer_store_dwordx2 v[2:3], v1, s[4:7], s8 offen offset:72",
              "s_nop 1", "v_mov_b32 v2, s70", "v_mov_b32 v3, s71", f"buffer_store_dwordx2 v[2:3], v1, s[4:7], s8 offen offset:80")
        e("L_end:", "s_endpgm")
        if c.loopbar_slot:
            e("L_bar:", "s_waitcnt vmcnt(0)", "s_barrier", "s_branch L_bar_ret")

    def slow(self):
        e = self.e
        S0 = V_S; BI = V_S + 32; MA, MB = V_S+90, V_S+91
        GV = V_S + 92
        SOFF = S_T0
        m0a = self.m0(S0, V_KM, 0, 0); m0b = self.m0(S0+16, V_KM, 1, 0)
        e("L_slow:",
          f"s_cmp_eq_u32 s{S_CNT}, 77", "s_cbranch_scc1 L_store",
          f"s_mov_b32 s{S_CNT}, 77", "s_waitcnt lgkmcnt(0)",
          f"v_permlane32_swap_b32 v{V_QT}, v{V_QT+2}", f"v_permlane32_swap_b32 v{V_QT+1}, v{V_QT+3}",
          f"v_mov_b32 v{MA}, 0xff800000", f"v_mov_b32 v{MB}, 0xff800000",
          f"s_mov_b32 s{SOFF}, s{S_HB}", f"s_add_u32 s{S_T1}, s{S_HB}, {HEAD_BYTES}",
          "L_slow1:",
          f"buffer_load_dwordx2 {vr(V_KT,2)}, v{V_ROW}, {sr(S_K,4)}, s{SOFF} offen offset:32",
          f"buffer_load_dwordx4 {vr(V_KM,4)}, v{V_ROW}, {sr(S_K,4)}, s{SOFF} offen",
          "s_waitcnt vmcnt(0)",
          self.m2b(S0, V_KT, 0), "s_nop 15", "s_nop 1",
          m0a, m0b, "s_nop 11")
        for k in range(8):
            e(f"v_max3_f32 v{MA}, v{S0+2*k}, v{S0+2*k+1}, v{MA}")
        for k in range(8):
            e(f"v_max3_f32 v{MB}, v{S0+16+2*k}, v{S0+16+2*k+1}, v{MB}")
        e(f"s_add_u32 s{SOFF}, s{SOFF}, 1280", f"s_cmp_lt_u32 s{SOFF}, s{S_T1}", "s_cbranch_scc1 L_slow1")
        e(f"v_mov_b32 v{GV}, v{MA}", f"v_mov_b32 v{GV+1}, v{MB}", "s_nop 1",
          f"v_permlane32_swap_b32 v{MA}, v{GV}", f"v_permlane32_swap_b32 v{MB}, v{GV+1}", "s_nop 1",
          f"v_max_f32 v{MA}, v{MA}, v{GV}", f"v_max_f32 v{MB}, v{MB}, v{GV+1}")
        for k in range(16):
            e(f"v_sub_f32 v{BI+k}, 0, v{MA}", f"v_sub_f32 v{BI+16+k}, 0, v{MB}")
        for k in range(16):
            e(f"v_mov_b32 v{V_O+k}, 0", f"v_mov_b32 v{V_O+32+k}, 0")
        e(f"v_and_b32 v{GV+1}, 31, v0", f"v_bfe_u32 v{GV}, v0, 5, 1", f"v_mul_u32_u24 v{GV}, 320, v{GV}",
          f"v_lshl_add_u32 v{GV}, v{GV+1}, 1, v{GV}",
          f"v_cmp_eq_u32 vcc, 20, v{GV+1}", f"v_mov_b32 v{GV+2}, 0x3f803f80", "s_nop 0",
          f"v_cndmask_b32 v{GV+2}, 0, v{GV+2}, vcc")
        for k in range(8):
            e(f"v_mov_b32 v{V_VA+k}, v{GV+2}")
        e(f"v_cmp_gt_u32 {sr(S_T2,2)}, 20, v{GV+1}",
          f"s_mov_b32 s{SOFF}, s{S_HB}",
          "L_slow2:",
          f"buffer_load_dwordx2 {vr(V_KT,2)}, v{V_ROW}, {sr(S_K,4)}, s{SOFF} offen offset:32",
          f"buffer_load_dwordx4 {vr(V_KM,4)}, v{V_ROW}, {sr(S_K,4)}, s{SOFF} offen",
          f"s_mov_b64 exec, {sr(S_T2,2)}")
        G = V_S + 64
        for s in range(2):
            for jj in range(8):
                e(f"buffer_load_ushort v{G+8*s+jj}, v{GV}, {sr(S_V,4)}, s{SOFF} offen offset:{640*s+40*jj}")
        e("s_waitcnt vmcnt(0)")
        for k in range(8):
            e(f"v_lshl_or_b32 v{V_VA+k}, v{G+2*k+1}, 16, v{G+2*k}")
        e("s_mov_b64 exec, -1", "s_nop 3",
          self.m2b(S0, V_KT, 0, c=vr(BI, 32)), "s_nop 15", "s_nop 1",
          m0a, m0b, "s_nop 11")
        for k in range(32):
            e(f"v_exp_f32 v{S0+k}, v{S0+k}")
        e("s_nop 1", self.smf(0, 0, V_VA, S0, 0), self.smf(1, 0, V_VA, S0+16, 0), self.smf(0, 0, V_VB, S0, 1), self.smf(1, 0, V_VB, S0+16, 1),
          f"s_add_u32 s{SOFF}, s{SOFF}, 1280", f"s_cmp_lt_u32 s{SOFF}, s{S_T1}", "s_cbranch_scc1 L_slow2",
          f"s_mov_b32 s{S_T0}, 0xc0800000", f"s_mov_b32 s{S_T3}, 0x32000000", f"v_mov_b32 v{V_T+6}, 0", "s_nop 11", "s_branch L_final")

    def build(self):
        self.setup_sched(); self.prologue(); self.main(); self.epilogue(); self.slow()
        hdr = open("cdna_kernels/%s.s.ref" % NAME).read().split("; @launch")[0]
        txt = hdr + f"; @launch grid=(256,1,1) block=(512,1,1) lds={LDS_BYTES}\n"
        txt += DOC
        txt += f'.amdgcn_target "amdgcn-amd-amdhsa--gfx950"\n.text\n.globl {NAME}_kernel\n.p2align 8\n.type {NAME}_kernel,@function\n{NAME}_kernel:\n'
        for x in self.L:
            txt += (x if x.endswith(":") or x.startswith(".") else "    " + x) + "\n"
        nv = 256 if self.cfg.maxv else (V_END + 7)//8*8
        txt += f""".section .rodata,"a"
.p2align 6
.amdhsa_kernel {NAME}_kernel
  .amdhsa_next_free_vgpr {nv}
  .amdhsa_next_free_sgpr 80
  .amdhsa_accum_offset {nv}
  .amdhsa_group_segment_fixed_size 0
  .amdhsa_kernarg_size 48
  .amdhsa_user_sgpr_count 2
  .amdhsa_user_sgpr_kernarg_segment_ptr 1
  .amdhsa_system_sgpr_workgroup_id_x 1
.end_amdhsa_kernel
"""
        return txt

DOC = """; Fused attention, one workgroup (8 waves) per (head, 512-query quarter).
"""

def regs_of(tok):
    m = re.fullmatch(r"v\[(\d+):(\d+)\]", tok)
    if m: return set(range(int(m.group(1)), int(m.group(2))+1))
    m = re.fullmatch(r"v(\d+)", tok)
    if m: return {int(m.group(1))}
    return set()
def parse(ins):
    p = ins.split(None, 1)
    op = p[0]; ops = [x.strip() for x in p[1].split(",")] if len(p) > 1 else []
    if ops: ops[-1] = ops[-1].split()[0] if ops[-1] else ops[-1]
    return op, ops
def states(op, ops):
    if op == "s_nop": return int(ops[0]) + 1
    return 1
TRANS = ("v_exp_f32", "v_rcp_f32")
def check(seq, label=""):
    errs = []
    P = [parse(x) for x in seq]
    for i, (op, ops) in enumerate(P):
        is_m = op.startswith("v_mfma") or op.startswith("v_smfmac")
        is_valu = op.startswith("v_") and not is_m
        if not (is_m or is_valu): continue
        D = regs_of(ops[0])
        if op.startswith("v_permlane32_swap"): D |= regs_of(ops[1])
        passes = 16 if "_2b_" in op else 8
        C = (D if op.startswith("v_smfmac") else regs_of(ops[3])) if is_m else set()
        dist = 0
        for k in range(i+1, min(i+40, len(P))):
            op2, ops2 = P[k]
            m2 = op2.startswith("v_mfma") or op2.startswith("v_smfmac")
            valu2 = op2.startswith("v_") and not m2
            mem2 = op2.startswith("ds_") or op2.startswith("buffer_")
            allr = [regs_of(x) for x in ops2]
            need = 0
            if is_m:
                if m2:
                    D2 = allr[0]; A2 = allr[1] | allr[2]
                    C2 = D2 if op2.startswith("v_smfmac") else allr[3]
                    if op2.startswith("v_smfmac"): A2 |= allr[3]
                    p2 = 16 if "_2b_" in op2 else 8
                    if A2 & D: need = max(need, {8: 12, 16: 20}[passes])
                    if C2 & D and not (C2 == D and p2 == passes): need = max(need, {8: 10, 16: 18}[passes])
                    if (D2 & D) and not (C2 & D) : need = max(need, 0)
                elif valu2 or mem2:
                    touched = set().union(*allr) if allr else set()
                    if touched & D: need = max(need, {8: 12, 16: 20}[passes])
                    if valu2 and (allr[0] & C): need = max(need, {8: 7, 16: 15}[passes])
            else:
                if m2:
                    rd = allr[1] | allr[2] | allr[3] | (allr[0] if op2.startswith("v_smfmac") else set())
                    if rd & D: need = 2
                elif valu2:
                    rd = set().union(*allr[1:]) if len(allr) > 1 else set()
                    if op2.startswith("v_permlane"): rd |= allr[0]
                    if op2.startswith(("v_fmac", "v_dot2c")): rd |= allr[0]
                    if rd & D:
                        if op in TRANS and op2 not in TRANS: need = max(need, 1)
                        if op2.startswith("v_permlane"): need = max(need, 2)
                        if op2.startswith(("v_readfirstlane", "v_readlane")): need = max(need, 1)
                        if op.startswith("v_dot2") and not (op2 == op and (allr[3] & D) and not ((allr[1] | allr[2]) & D)): need = max(need, 3)
                if op.startswith(("v_cmp", "v_readfirstlane")) and valu2:
                    dst = ops[0]
                    if any(dst == x for x in ops2[1:]): need = max(need, 2)
                if op.startswith(("v_cmp", "v_readfirstlane")) and op2.startswith("buffer_"):
                    if any(ops[0] == x for x in ops2): need = max(need, 5)
            if need > dist:
                errs.append(f"{label}: [{i}] {seq[i]}  ->  [{k}] {seq[k]} : need {need} have {dist}")
            dist += states(op2, ops2)
            if op2 in ("s_branch", "s_endpgm"): break
    for i, (op, ops) in enumerate(P):
        if op in ("buffer_store_dwordx4", "ds_write_b128"):
            d = regs_of(ops[0] if op.startswith("buffer") else ops[1])
            for k in (i+1, i+2):
                if k < len(P) and P[k][0].startswith("v_") and regs_of(P[k][1][0]) & d: errs.append(f"{label}: store WAR {seq[i]} -> {seq[k]}")
        if op.startswith("s_") and ops and ops[0] == "m0" and i+1 < len(P) and P[i+1][0].startswith("buffer_load") and "lds" in seq[i+1]:
            errs.append(f"{label}: m0 hazard {seq[i]} -> {seq[i+1]}")
    return errs

def main():
    ap = argparse.ArgumentParser()
    ap.add_argument("-o", default="cdna_kernels/%s.s" % NAME)
    ap.add_argument("--stamps", action="store_true")
    ap.add_argument("--p0", type=int, default=2)
    ap.add_argument("--pa", type=int, default=0)
    ap.add_argument("--obar", type=int, default=1)
    ap.add_argument("--pst", action="store_true")
    ap.add_argument("--stflags", default="sc1")
    ap.add_argument("--dummy", type=int, default=0)
    ap.add_argument("--dbg", action="store_true")
    ap.add_argument("--b2", type=int, default=1)
    ap.add_argument("--b3", type=int, default=3)
    ap.add_argument("--dummychk", type=int, default=1)
    ap.add_argument("--pat", default="A")
    ap.add_argument("--est", action="store_true")
    ap.add_argument("--dma_start", type=int, default=0)
    ap.add_argument("--dma_pos", default="1,4")
    ap.add_argument("--bars", default="2,4,9")
    ap.add_argument("--loopbar_slot", type=int, default=27)
    ap.add_argument("--prio", default="3,2,2,1,1,0")
    ap.add_argument("--align", type=int, default=6)
    ap.add_argument("--maxv", action="store_true")
    c = ap.parse_args()
    c.dma_pos = [int(x) for x in c.dma_pos.split(",")]
    c.bars = [int(x) for x in c.bars.split(",")] if c.bars else []
    c.prio = [int(x) for x in c.prio.split(",")] if c.prio else []
    g = Gen(c)
    txt = g.build()
    code = lambda L: [x for x in L if not (x.endswith(":") or x.startswith("."))]
    errs = check(code(g.L), "linear")
    errs += check(code(g.L[g.loop_start:g.loop_end] + g.L[g.loop_start:g.loop_end]), "loop")
    for x in errs: print("HAZARD", x)
    open(c.o, "w").write(txt)
    print("wrote", c.o, "instrs", len(code(g.L)), "vgprs", V_END)
main()
```

```python
import sys, math, struct, re, argparse

NAME = "standalone__fused_io_aware_attn__prompt"
def f32bits(x): return struct.unpack("<I", struct.pack("<f", x))[0]
AG = 1000
def vr(b, n=1):
    f = "v"
    if b >= AG: f, b = "a", b - AG
    return f"{f}[{b}:{b+n-1}]" if n > 1 else f"{f}{b}"
def sr(b, n=1): return f"s[{b}:{b+n-1}]" if n > 1 else f"s{b}"

V_T = 1
V_OK = 8
V_OS = V_OK + 32
V_S = V_OS + 32
V_IDX = V_S + 96
V_AK = V_IDX + 1
V_AV = V_AK + 1
V_M01 = V_AV + 1
V_ROW = V_M01 + 1
V_DMA = V_ROW + 1
V_L4 = V_DMA + 1
V_XW = V_L4 + 1
V_QA = V_XW + 1
V_XR = V_QA + 5
V_XT = V_XR + 1
V_XL = V_XT + 1
V_X4 = V_XL + 1
V_GT = V_X4 + 1
V_QL1 = (V_GT + 2)//2*2
V_END = V_QL1 + 5
assert V_QA % 2 == 0
ACC_OFF = (V_END + 3)//4*4
V_Q = AG
V_QT = V_Q + 16
KB = [(V_QT + 4, V_QT + 8), (V_QT + 10, V_QT + 14)]
VB = [(V_QT + 16, V_QT + 20), (V_QT + 24, V_QT + 28)]
A_END = V_QT + 32 - AG
def oacc(pair, i): return (V_OS if i else V_OK) + 16*pair

S_Q, S_K, S_V, S_O, S_D = 12, 16, 20, 24, 28
S_W, S_HB, S_G, S_OUT, S_REL, S_DOFF, S_LO, S_MSK, S_CNT, S_INC, S_T0, S_T1, S_T2, S_T3 = range(32, 46)
S_OK = 46
S_STAMP = 48
S_C2 = 72
S_HI = 74
S_MB = 75
S_B = 76
S_BO = 80
S_QG = 82
S_KP = 83
S_MV = 81
TOTAL_BYTES = 2*32*2048*20*2
HEAD_BYTES = 2048*40
HALF_BYTES = 1024*40
L_V = [4096, 122880]
L_K = [43008, 81920]
L_Q = 143360
L_FLAG = 3720
assert L_FLAG % 32 == 8
L_CNT = [L_FLAG + 128 + 16*k for k in range(4)]
LDS_BYTES = 163840

def regs_of(tok):
    m = re.fullmatch(r"([va])\[(\d+):(\d+)\]", tok)
    if m: return set(range((AG if m.group(1) == "a" else 0) + int(m.group(2)), (AG if m.group(1) == "a" else 0) + int(m.group(3)) + 1))
    m = re.fullmatch(r"([va])(\d+)", tok)
    if m: return {(AG if m.group(1) == "a" else 0) + int(m.group(2))}
    return set()
def parse(ins):
    p = ins.split(None, 1)
    op = p[0]; ops = [x.strip() for x in p[1].split(",")] if len(p) > 1 else []
    if ops: ops[-1] = ops[-1].split()[0] if ops[-1] else ops[-1]
    return op, ops
def is_code(x): return not (x.endswith(":") or x.startswith("."))

def flat(xs):
    out = []
    for x in xs:
        if isinstance(x, list): out += flat(x)
        elif x is not None: out.append(x)
    return out

class Gen:
    def __init__(self, cfg):
        self.cfg = cfg
        self.L = []
        self.vm = []
        self.retries = []
        self.lq = []
    def e(self, *xs):
        for x in flat(list(xs)):
            if callable(x): x = x()
            if isinstance(x, tuple):
                self.vm.append(x[2]); x = x[1]
            if is_code(x):
                op, ops = parse(x)
                if op == "s_waitcnt" and "lgkmcnt" in x:
                    n = int(re.search(r"lgkmcnt\((\d+)\)", x).group(1))
                    if n < len(self.lq): self.lq = self.lq[len(self.lq)-n:] if n else []
                elif op.startswith(("v_", "ds_", "buffer_")):
                    touched = set().union(*[regs_of(t) for t in ops]) if ops else set()
                    last = max((i for i, d in enumerate(self.lq) if d & touched), default=-1)
                    if last >= 0:
                        n = len(self.lq) - 1 - last
                        self.L.append(f"s_waitcnt lgkmcnt({n})")
                        self.lq = self.lq[last+1:]
                    if op.startswith("ds_read"): self.lq.append(regs_of(ops[0]))
                    elif op.startswith(("ds_write", "ds_add")): self.lq.append(set())
                    assert len(self.lq) <= 15, "lgkmcnt overflow"
            self.L.append(x)
    def VM(self, ins, tag): return ("VM", ins, tag)
    def vmwait(self, tag):
        def f():
            i = max(k for k, t in enumerate(self.vm) if t == tag)
            return f"s_waitcnt vmcnt({len(self.vm) - 1 - i})"
        return f
    def stamp(self, name):
        c = self.cfg
        if c.stamps and name in c.stamps:
            self.L.append(f"s_memtime {sr(S_STAMP + 2*c.stamps.index(name), 2)}")
        if c.stamps and name + "r" in c.stamps:
            self.L.append(f"s_memrealtime {sr(S_STAMP + 2*c.stamps.index(name + 'r'), 2)}")

    def dma_round(self, n):
        out = []
        if n >= 2 and n % 2 == 0 and not (self.cfg.mini == 1 and n == 2):
            out += [f"s_add_u32 m0, m0, 4096", f"s_add_u32 s{S_DOFF}, s{S_DOFF}, 4096"]
        off = (n & 1) * 2048
        out.append(self.VM(f"buffer_load_dwordx4 v{V_DMA}, {sr(S_D,4)}, s{S_DOFF} offen" + (f" offset:{off}" if off else "") + " lds", f"r{n}"))
        return out

    def qconv(self, regs):
        one = lambda r, t: [f"v_lshlrev_b32 v{t}, 16, v{r}", f"v_and_b32 v{t+1}, s{S_MSK}, v{r}",
                            f"v_pk_mul_f32 {vr(t,2)}, {vr(t,2)}, {sr(S_C2,2)}", f"v_cvt_pk_bf16_f32 v{r}, v{t}, v{t+1}"]
        out = []
        for i in range(0, len(regs) - 1, 2):
            for x, y in zip(one(regs[i], 2), one(regs[i+1], 4)): out += [x, y]
        if len(regs) & 1: out += one(regs[-1], 2)
        return out
    def stage_q(self, regs, p, ta, tb):
        W16, W4 = V_QA + 3, V_QA + 4
        return [self.vmwait(ta), self.qconv(list(range(regs, regs+4))), f"ds_write_b128 v{W16}, {vr(regs,4)} offset:{2560*p}",
                self.vmwait(tb), self.qconv([regs+4]), f"ds_write_b32 v{W4}, v{regs+4} offset:{2560*p+1024}", "s_waitcnt lgkmcnt(0)"]
    def rd4(self, dst, a, off):
        return [f"ds_read_b64 {vr(dst,2)}, v{a} offset:{off}", f"ds_read_b64 {vr(dst+2,2)}, v{a} offset:{off+8}"]
    def q_tail(self, p): return f"ds_read_b64 {vr(V_QT+2*p,2)}, v{V_QA+2} offset:{2560*p+32}"
    def q_main(self, p): return self.rd4(V_Q+8*p, V_QA, 2560*p) + self.rd4(V_Q+8*p+4, V_QA+1, 2560*p)
    def k_tail(self, b, off): return [f"ds_read_b64 {vr(KB[b][1],2)}, v{V_AK} offset:{off+32}"]
    def k_main(self, b, off): return self.rd4(KB[b][0], V_AK, off)
    def v_half(self, b, h, off):
        assert 0 <= off <= 2560
        r = VB[b][h]
        return [f"ds_read_b64_tr_b16 {vr(r,2)}, v{V_AV} offset:{off+640*h}", f"ds_read_b64_tr_b16 {vr(r+2,2)}, v{V_AV} offset:{off+640*h+160}"]

    def m2b(self, sbuf, kt, pair, c="0"):
        return f"v_mfma_f32_32x32x4_2b_bf16 {vr(sbuf,32)}, {vr(kt,2)}, {vr(V_QT+2*pair,2)}, {c} cbsz:1 abid:0"
    def m0(self, d, km, pair, i):
        return f"v_mfma_f32_32x32x16_bf16 {vr(d,16)}, {vr(km,4)}, {vr(V_Q+8*pair+4*i,4)}, {vr(d,16)}"
    def smf(self, pair, i, vreg, b):
        return f"v_smfmac_f32_32x32x32_bf16 {vr(oacc(pair,i),16)}, {vr(vreg,4)}, {vr(b,8)}, v{V_IDX}"

    def plan(self):
        c = self.cfg
        ds, de = c.ds, c.de
        items = [(0, t) for t in range(ds)] + [(1, t) for t in range(ds)]
        for t in range(ds, 32 - de): items += [(0, t), (1, t)]
        items += [(0, t) for t in range(32 - de, 32)] + [(1, t) for t in range(32 - de, 32)]
        assert len(items) == 64
        self.items = items
        self.niter = {1: 9, 3: 8}[de]
        self.l0 = 9; self.l1 = 9 + 6*self.niter
        assert 2*ds <= 8
        kt = {s: items[s+1][1] for s in range(-1, 63)}
        vt = {s: items[s-1][1] for s in range(1, 65)}
        kb, vb = {}, {}
        for s in range(self.l0 - 1, self.l1): kb[s] = 0; vb[s] = 0
        def reg(tt, s): return tt[s] == tt.get(s+1) or tt[s] == tt.get(s-1)
        for s in range(self.l0 - 2, -2, -1):
            kb[s] = kb[s+1] if (kt[s] == kt[s+1] or (kt.get(s-1) == kt[s])) else 1 - kb[s+1]
        for s in range(self.l0 - 2, 0, -1):
            vb[s] = vb[s+1] if (vt[s] == vt[s+1] or (vt.get(s-1) == vt[s])) else 1 - vb[s+1]
        for s in range(self.l1, 63):
            kb[s] = kb[s-1] if (kt[s] == kt[s-1] or kt.get(s-2) == kt[s-1]) else 1 - kb[s-1]
        for s in range(self.l1, 65):
            vb[s] = vb[s-1] if (vt[s] == vt[s-1] or vt.get(s-2) == vt[s-1]) else 1 - vb[s-1]
        self.kt, self.vt, self.kb, self.vb = kt, vt, kb, vb
        self.kl, self.vl = {}, {}
        kc, vc = {kb[-1]: kt[-1]}, {}
        for s in range(-1, 64):
            if s+1 in kt and kc.get(kb[s+1]) != kt[s+1]: self.kl[s] = kt[s+1]; kc[kb[s+1]] = kt[s+1]
            if s+1 in vt and vc.get(vb[s+1]) != vt[s+1]: self.vl[s] = vt[s+1]; vc[vb[s+1]] = vt[s+1]
    def loads_in(self, s):
        return self.kl.get(s), self.vl.get(s)
    def need_round(self, s0, s1):
        need = 0
        for s in range(s0, s1):
            k, v = self.loads_in(s)
            need = max([need] + [1280*(t+1) for t in (k, v) if t is not None])
        return (need + 2047)//2048 - 1

    def need_tag(self, s0, s1):
        if not self.cfg.mini: return f"r{self.need_round(s0, s1)}"
        tmax = max([0] + [t for s in range(s0, s1) for t in self.loads_in(s) if t is not None])
        if self.cfg.mini == 2: return "mA" if tmax <= 1 else f"r{self.need_round(s0, s1)}"
        if tmax <= 2: return "mB"
        if tmax == 3: return "mC"
        return f"r{self.need_round(s0, s1)}"

    def slot(self, j, kbase, vbase, X=None, late=False, skip_loads=False):
        X = X or {}
        x = lambda k: X.get(k, [])
        c = self.cfg
        sc = V_S + 32*(j % 3); sn = V_S + 32*((j+1) % 3); sp = V_S + 32*((j-1) % 3)
        ex = [f"v_exp_f32 v{sc+i}, v{sc+i}" for i in range(32)]
        M2 = MA = MB = S1 = S2 = S3 = S4 = None
        if j < 63:
            pn = self.items[j+1][0]; km, ktl = KB[self.kb[j]]
            M2, MA, MB = self.m2b(sn, ktl, pn), self.m0(sn, km, pn, 0), self.m0(sn+16, km, pn, 1)
        if j > 0:
            pp = self.items[j-1][0]; va, vb = VB[self.vb[j]]
            S1, S2, S3, S4 = self.smf(pp, 0, va, sp), self.smf(pp, 1, va, sp+16), self.smf(pp, 0, vb, sp+8), self.smf(pp, 1, vb, sp+24)
        k, v = self.loads_in(j)
        if skip_loads: k = v = None
        KT = KM = VA = VBh = []
        kjit = vjit = True
        if k is not None:
            b = self.kb[j+1]; KT = self.k_tail(b, (k-kbase)*1280); KM = self.k_main(b, (k-kbase)*1280); kjit = (b == self.kb[j])
        if v is not None:
            b = self.vb[j+1]; VA = self.v_half(b, 0, (v-vbase)*1280); VBh = self.v_half(b, 1, (v-vbase)*1280); vjit = (j > 0 and b == self.vb[j])
        a1 = [] if kjit else KM
        a2 = VA
        a3 = [] if vjit else VBh
        a4 = KM if kjit else []
        a5 = VBh if vjit else []
        if c.prio: self.e(f"s_setprio {c.hprio[j] if (j < len(c.hprio)) else c.prio[j % len(c.prio)]}")
        if late:
            self.e(x(0), ex[0:2], x(8), ex[2:4], x(6), ex[4:6], M2, KT, x(7), ex[6:10], x(1), S1, a1, x(2), ex[10:14], S2, a2, ex[14:18], S3, x(3), ex[18:22],
                   MA, a3, ex[22:25], MB, a4, x(4), ex[25:28], S4, a5, ex[28:32], x(5))
        elif c.ordb and j >= self.l0 - 1 and vjit and kjit:
            self.e(x(0), M2, KT, ex[0:4], x(1), ex[4:8], S1, x(2), ex[8:12], S3, ex[12:16],
                   MA, x(3), ex[16:20], MB, a4, ex[20:24], S2, a2, x(4), ex[24:28], S4, a5, ex[28:32], x(5))
        else:
            self.e(x(0), M2, KT, ex[0:4], x(1), ex[4:8], S1, a1, x(2), ex[8:12], S2, a2, ex[12:16], "s_nop 1" if j == 0 else None,
                   MA, a3, x(3), ex[16:20], MB, a4, ex[20:24], S3, x(4), ex[24:28], S4, a5, ex[28:32], x(5))

    def prologue(self):
        c = self.cfg
        e = self.e
        scale = math.log2(math.e) / math.sqrt(20.0)
        QL = V_S + 64
        QL1 = self.QL1 = V_QL1
        A0, A1, A2, W16, W4 = range(V_QA, V_QA + 5)
        e("s_cmp_ge_u32 s2, 256", "s_cbranch_scc1 L_end", "s_load_dwordx8 s[4:11], s[0:1], 0")
        self.stamp("start")
        if c.stamps: e("s_memrealtime s[70:71]")
        e(f"v_lshrrev_b32 v1, 6, v0",
          f"v_and_b32 v2, 63, v0",
          f"v_readfirstlane_b32 s{S_W}, v1",
          f"s_and_b32 s{S_T0}, s2, 7",
          f"s_lshl_b32 s{S_T0}, s{S_T0}, 3",
          f"s_lshr_b32 s{S_T1}, s2, 5",
          f"s_add_u32 s{S_T0}, s{S_T0}, s{S_T1}",
          f"s_mul_i32 s{S_HB}, s{S_T0}, {HEAD_BYTES}",
          f"s_bfe_u32 s{S_T0}, s2, 0x20003",
          f"s_mul_i32 s{S_OUT}, s{S_T0}, 20480",
          f"s_add_u32 s{S_OUT}, s{S_OUT}, s{S_HB}",
          f"v_lshlrev_b32 v{V_DMA}, 4, v2",
          f"v_lshlrev_b32 v{V_L4}, 2, v2",
          f"s_lshr_b32 s{S_T1}, s{S_W}, 1" if c.pair else f"s_and_b32 s{S_T1}, s{S_W}, 3",
          f"s_mul_i32 s{S_G}, s{S_T1}, 5120",
          f"s_and_b32 s{S_T2}, s{S_W}, 1" if c.pair else f"s_lshr_b32 s{S_T2}, s{S_W}, 2",
          f"s_mul_i32 s{S_REL}, s{S_T2}, 1280",
          f"s_add_u32 s{S_REL}, s{S_REL}, s{S_G}",
          f"s_add_u32 s{S_OUT}, s{S_OUT}, s{S_REL}",
          f"s_and_b32 s{S_T0}, s{S_W}, 1",
          [f"s_lshl_b32 s{S_T3}, s{S_W}, 8", f"s_and_b32 s{S_T3}, s{S_T3}, 1024"] if c.pair else f"s_lshl_b32 s{S_T3}, s{S_T2}, 10",
          f"s_mul_i32 s{S_DOFF}, s{S_T0}, {HALF_BYTES}",
          f"s_add_u32 s{S_DOFF}, s{S_DOFF}, s{S_HB}",
          f"s_add_u32 s{S_DOFF}, s{S_DOFF}, s{S_T3}",
          f"s_mul_i32 s{S_T1}, s{S_T0}, {L_K[1]-L_K[0]}",
          f"s_add_u32 s{S_T1}, s{S_T1}, {L_K[0]}",
          [f"s_lshr_b32 s{S_HI}, s{S_W}, 1", f"s_mul_i32 s{S_HI}, s{S_HI}, 640", f"s_add_u32 m0, s{S_T1}, s{S_HI}",
           f"s_sub_u32 s{S_LO}, s{S_DOFF}, s{S_T3}", f"s_add_u32 s{S_LO}, s{S_LO}, s{S_HI}",
           f"s_mov_b32 s{S_K+2}, {TOTAL_BYTES}", f"s_mov_b32 s{S_K+3}, 0x20000"] if c.k01 else [],
          [f"s_sub_u32 s{S_QG}, s{S_OUT}, s{S_REL}", f"s_add_u32 s{S_QG}, s{S_QG}, s{S_G}",
           f"s_mul_i32 s{S_KP}, s{S_T2}, {HALF_BYTES}", f"s_add_u32 s{S_KP}, s{S_KP}, s{S_HB}",
           f"s_mul_i32 s{S_MV}, s{S_T2}, {L_K[1]-L_K[0]}", f"s_add_u32 m0, s{S_MV}, {L_K[0]}",
           f"v_lshlrev_b32 v7, 3, v2"] if c.priv else [],
          f"s_mul_i32 s{S_T0}, s{S_T0}, {L_V[1]-L_V[0]}",
          f"s_add_u32 s{S_T0}, s{S_T0}, {L_V[0]}",
          f"s_mov_b32 s{S_Q+2}, {TOTAL_BYTES}",
          f"s_mov_b32 s{S_Q+3}, 0x20000",
          f"s_mov_b32 s{S_D+2}, {TOTAL_BYTES}",
          f"s_mov_b32 s{S_D+3}, 0x20000",
          f"s_bitcmp1_b32 s{S_W}, 1",
          f"s_cselect_b32 s{S_T0}, s{S_T0}, s{S_T1}",
          f"s_waitcnt lgkmcnt(0)",
          f"s_mov_b32 s{S_Q}, s4",
          f"s_mov_b32 s{S_Q+1}, s5",
          f"s_cselect_b32 s{S_D}, s8, s6",
          f"s_cselect_b32 s{S_D+1}, s9, s7",
          f"s_add_u32 {'s%d' % S_CNT if c.k01 else 'm0'}, s{S_T0}, s{S_T3}",
          [] if c.priv else [
          self.VM(f"buffer_load_dwordx4 {vr(QL,4)}, v{V_DMA}, {sr(S_Q,4)}, s{S_OUT} offen", "q0a"),
          self.VM(f"buffer_load_dword v{QL+4}, v{V_L4}, {sr(S_Q,4)}, s{S_OUT} offen offset:1024", "q0b")])
        if c.priv:
            e(f"s_mov_b32 s{S_K}, s6", f"s_mov_b32 s{S_K+1}, s7",
              self.VM(f"buffer_load_dwordx4 {vr(QL,4)}, v{V_DMA}, {sr(S_Q,4)}, s{S_QG} offen", "q0a"),
              self.VM(f"buffer_load_dwordx4 v{V_DMA}, {sr(S_K,4)}, s{S_KP} offen lds", "k0a"),
              self.VM(f"buffer_load_dwordx4 {vr(QL+4,4)}, v{V_DMA}, {sr(S_Q,4)}, s{S_QG} offen offset:1024", "q0b"),
              self.VM(f"buffer_load_dwordx2 {vr(QL+8,2)}, v7, {sr(S_Q,4)}, s{S_QG} offen offset:2048", "q0c"),
              self.VM(f"buffer_load_dwordx4 v{V_DMA}, {sr(S_K,4)}, s{S_KP} offen offset:1024 lds", "k0b"),
              self.VM(f"buffer_load_dwordx4 v{V_DMA}, {sr(S_K,4)}, s{S_KP} offen offset:1536 lds", "k01"),
              f"s_mov_b32 m0, s{S_CNT}", "s_nop 0")
        elif c.k01:
            e(f"s_mov_b32 s{S_K}, s6", f"s_mov_b32 s{S_K+1}, s7", "s_mov_b32 exec_hi, 0xff",
              self.VM(f"buffer_load_dwordx4 v{V_DMA}, {sr(S_K,4)}, s{S_LO} offen lds", "k01"),
              "s_mov_b32 exec_hi, -1", f"s_mov_b32 m0, s{S_CNT}", "s_nop 0")
        if c.mini == 1:
            e(f"s_and_b32 s{S_T0}, s{S_W}, 1",
              f"s_mul_i32 s{S_T0}, s{S_T0}, {L_V[1]-L_V[0]}",
              f"s_add_u32 s{S_T0}, s{S_T0}, {L_V[0]}",
              f"s_add_u32 s{S_MV}, s{S_T0}, s{S_HI}",
              f"s_bfe_u32 s{S_BO}, s{S_W}, 0x10001",
              f"s_mul_i32 s{S_BO}, s{S_BO}, 640",
              f"s_add_u32 s{S_BO}, s{S_BO}, 2560",
              f"s_cmp_ge_u32 s{S_W}, 4",
              f"s_cselect_b32 s{S_MB}, s{S_T1}, s{S_T0}",
              f"s_cselect_b32 s{S_B}, s6, s8", f"s_cselect_b32 s{S_B+1}, s7, s9",
              f"s_mov_b32 s{S_B+2}, {TOTAL_BYTES}", f"s_mov_b32 s{S_B+3}, 0x20000",
              f"s_add_u32 s{S_MB}, s{S_MB}, s{S_BO}",
              f"s_add_u32 s{S_BO}, s{S_BO}, s{S_LO}",
              f"s_sub_u32 s{S_BO}, s{S_BO}, s{S_HI}",
              f"s_mov_b32 s{S_V}, s8", f"s_mov_b32 s{S_V+1}, s9", f"s_mov_b32 s{S_V+2}, {TOTAL_BYTES}", f"s_mov_b32 s{S_V+3}, 0x20000",
              [f"s_add_u32 s{S_CNT}, s{S_CNT}, 4096", f"s_add_u32 s{S_DOFF}, s{S_DOFF}, 4096"] if c.mini == 1 else [])
        if c.mini == 2:
            e(f"s_and_b32 s{S_T0}, s{S_W}, 1",
              f"s_mul_i32 s{S_T0}, s{S_T0}, {L_V[1]-L_V[0]}",
              f"s_add_u32 s{S_T0}, s{S_T0}, {L_V[0]}",
              f"s_add_u32 s{S_MV}, s{S_T0}, s{S_HI}",
              f"s_mov_b32 s{S_V}, s8", f"s_mov_b32 s{S_V+1}, s9", f"s_mov_b32 s{S_V+2}, {TOTAL_BYTES}", f"s_mov_b32 s{S_V+3}, 0x20000")
        e([self.dma_round(n) for n in range(0, c.pa + 1)])
        batch2 = lambda: [self.VM(f"buffer_load_dwordx4 {vr(QL1,4)}, v{V_DMA}, {sr(S_Q,4)}, s{S_OUT} offen offset:2560", "q1a"),
                  self.VM(f"buffer_load_dword v{QL1+4}, v{V_L4}, {sr(S_Q,4)}, s{S_OUT} offen offset:3584", "q1b")]
        batch3 = lambda: [self.dma_round(n) for n in range(max(c.pa, c.pb) + 1, c.p0 + 1)]
        mA = lambda: [f"s_mov_b32 m0, s{S_MV}", "s_mov_b32 exec_hi, 0xff", self.VM(f"buffer_load_dwordx4 v{V_DMA}, {sr(S_V,4)}, s{S_LO} offen lds", "mA"),
                      f"s_mov_b32 m0, s{S_MB}", "s_nop 0", self.VM(f"buffer_load_dwordx4 v{V_DMA}, {sr(S_B,4)}, s{S_BO} offen lds", "mB"), "s_mov_b32 exec_hi, -1"]
        mC = lambda: ["s_mov_b32 exec_hi, 0xff", self.VM(f"buffer_load_dwordx4 v{V_DMA}, {sr(S_B,4)}, s{S_BO} offen offset:1280 lds", "mC"), "s_mov_b32 exec_hi, -1",
                      f"s_mov_b32 m0, s{S_CNT}", "s_nop 0"]
        def at(pos):
            if c.mini == 2:
                if c.b2 == pos: e(f"s_mov_b32 m0, s{S_MV}", "s_mov_b32 exec_hi, 0xff", self.VM(f"buffer_load_dwordx4 v{V_DMA}, {sr(S_V,4)}, s{S_LO} offen lds", "mA"),
                                  "s_mov_b32 exec_hi, -1", f"s_mov_b32 m0, s{S_CNT}", batch2())
                if c.b3 == pos: e(batch3())
                return
            if c.mini:
                if c.bm == pos: e(mA())
                if c.b2 == pos: e(batch2(), mC())
                if c.b3 == pos: e(batch3())
                return
            if c.b2 == pos: e([self.dma_round(n) for n in range(c.pa + 1, c.pb + 1)], batch2())
            if c.b3 == pos: e(batch3())
        if c.obar == 2: e("s_barrier")
        at(0)
        e(f"s_mov_b32 s{S_C2}, 0x{f32bits(scale):08x}", f"s_mov_b32 s{S_C2+1}, 0x{f32bits(scale):08x}",
          f"s_mov_b32 s{S_MSK}, 0xffff0000",
          f"v_mov_b32 v{V_S}, 0", f"v_mov_b32 v{V_S+1}, 0",
          f"v_and_b32 v1, 1, v0",
          f"v_cmp_eq_u32 vcc, 0, v1",
          f"v_mfma_f32_32x32x4_2b_bf16 {vr(V_OK,32)}, {vr(V_S,2)}, {vr(V_S,2)}, 0",
          f"v_mfma_f32_32x32x4_2b_bf16 {vr(V_OS,32)}, {vr(V_S,2)}, {vr(V_S,2)}, 0",
          f"v_mov_b32 v4, 0x3f80",
          f"v_lshlrev_b32 v1, 3, v0",
          f"v_mov_b32 v5, 0",
          f"v_cndmask_b32 v4, 0, v4, vcc",
          f"v_and_b32 v3, 31, v0",
          f"ds_write_b64 v1, v[4:5]",
          f"v_mul_u32_u24 v3, 40, v3",
          f"v_bfe_u32 v6, v0, 5, 1",
          f"v_lshl_add_u32 v{V_ROW}, v6, 4, v3",
          f"s_mul_i32 s{S_T0}, s{S_T2}, {L_K[1]-L_K[0]}",
          f"s_add_u32 s{S_T0}, s{S_T0}, {L_K[0]}",
          f"v_add_u32 v{V_AK}, s{S_T0}, v{V_ROW}",
          f"s_add_u32 s{S_T0}, s{S_REL}, {L_Q}",
          f"v_add_u32 v{W16}, s{S_T0}, v{V_DMA}",
          f"v_add_u32 v{W4}, s{S_T0}, v{V_L4}",
          f"v_add_u32 v{A0}, s{S_T0}, v{V_ROW}",
          f"s_lshl_b32 s{S_T1}, s{S_G}, 1",
          f"s_sub_u32 s{S_T0}, s{S_T1}, s{S_REL}",
          f"s_add_u32 s{S_T0}, s{S_T0}, {L_Q + 1280}",
          f"v_add_u32 v{A1}, s{S_T0}, v{V_ROW}",
          f"s_lshl_b32 s{S_T1}, s{S_T2}, 5",
          f"v_xor_b32 v{A2}, s{S_T1}, v2",
          f"v_mul_u32_u24 v{A2}, 40, v{A2}",
          f"s_add_u32 s{S_T0}, s{S_G}, {L_Q}",
          f"v_add_u32 v{A2}, s{S_T0}, v{A2}")
        if c.b2 == 1 or c.b3 == 1 or (c.mini and c.bm == 1):
            if c.obar: e("s_barrier")
            at(1)
        e(f"v_mov_b32 v{V_IDX}, 0xdddd",
          f"s_movk_i32 s{S_INC}, 3840",
          f"s_mov_b32 s{S_K}, s6", f"s_mov_b32 s{S_K+1}, s7", f"s_mov_b32 s{S_K+2}, {TOTAL_BYTES}", f"s_mov_b32 s{S_K+3}, 0x20000",
          f"s_mov_b32 s{S_V}, s8", f"s_mov_b32 s{S_V+1}, s9", f"s_mov_b32 s{S_V+2}, {TOTAL_BYTES}", f"s_mov_b32 s{S_V+3}, 0x20000",
          f"s_mov_b32 s{S_O}, s10", f"s_mov_b32 s{S_O+1}, s11", f"s_mov_b32 s{S_O+2}, {TOTAL_BYTES}", f"s_mov_b32 s{S_O+3}, 0x20000",
          f"s_lshr_b32 s{S_T0}, s{S_W}, 1", f"s_mul_i32 s{S_T0}, s{S_T0}, 38912", f"s_and_b32 s{S_T1}, s{S_W}, 1",
          f"s_mul_i32 s{S_T1}, s{S_T1}, 6144", f"s_add_u32 s{S_T0}, s{S_T0}, s{S_T1}", f"s_add_u32 s{S_T0}, s{S_T0}, 6144",
          f"s_add_u32 s{S_T1}, s{S_T0}, {6144 if c.pair else 2*38912}", f"s_sub_u32 s{S_T3}, s{S_T0}, {6144 if c.pair else 2*38912}",
          f"s_cmp_eq_u32 s{S_T2}, 0", f"s_cselect_b32 s{S_T1}, s{S_T1}, s{S_T3}",
          f"v_add_u32 v{V_XW}, s{S_T0}, v{V_DMA}",
          f"v_add_u32 v{V_XR}, s{S_T1}, v{V_DMA}",
          f"v_bfe_u32 v1, v0, 4, 1",
          f"v_and_b32 v{V_GT}, 0xff, v{V_DMA}",
          f"v_mul_u32_u24 v{V_X4}, 3072, v1",
          f"v_add3_u32 v{V_X4}, v{V_X4}, v{V_GT}, s{S_T1}",
          f"v_mul_u32_u24 v1, 2560, v1",
          f"v_add_u32 v{V_GT}, v1, v{V_GT}",
          f"v_lshl_add_u32 v1, v6, 3, v3",
          f"v_add_u32 v{V_XT}, s{S_T1}, v1",
          f"v_mul_u32_u24 v1, 40, v2",
          f"v_add_u32 v{V_XL}, s{S_T1}, v1",
          f"s_mul_i32 s{S_T0}, s{S_T2}, {L_V[1]-L_V[0]}",
          f"s_add_u32 s{S_T0}, s{S_T0}, {L_V[0]}",
          f"v_bfe_u32 v1, v0, 2, 2",
          f"v_lshl_add_u32 v1, v6, 3, v1",
          f"v_mul_u32_u24 v1, 40, v1",
          f"v_and_b32 v2, 19, v0",
          f"v_bfe_u32 v3, v0, 4, 1",
          f"v_and_b32 v5, 3, v0",
          f"v_lshlrev_b32 v3, 5, v3",
          f"v_lshl_add_u32 v3, v5, 3, v3",
          f"v_add3_u32 v1, v1, v3, s{S_T0}",
          f"v_lshlrev_b32 v6, 6, v6",
          f"v_lshrrev_b32 v5, 1, v5",
          f"v_lshl_add_u32 v6, v5, 3, v6",
          f"v_cmp_lt_u32 vcc, 16, v2",
          f"v_add_u32 v6, 160, v6",
          f"s_mov_b64 {sr(S_OK,2)}, -1",
          f"v_cndmask_b32 v{V_AV}, v1, v6, vcc",
          f"v_cndmask_b32 v{V_M01}, 1, 0, vcc")
        at(2)
        self.stamp("setup")
        if c.priv:
            WA, WB = QL + 10, QL + 11
            e(f"s_add_u32 s{S_T0}, s{S_G}, {L_Q}", f"v_add_u32 v{WA}, s{S_T0}, v{V_DMA}", f"v_add_u32 v{WB}, s{S_T0}, v7",
              self.vmwait("q0a"))
            at(3)
            e(self.qconv(list(range(QL, QL+4))), f"ds_write_b128 v{WA}, {vr(QL,4)}",
              self.vmwait("q0b"), self.qconv(list(range(QL+4, QL+8))), f"ds_write_b128 v{WA}, {vr(QL+4,4)} offset:1024",
              self.vmwait("q0c"), self.qconv([QL+8, QL+9]), f"ds_write_b64 v{WB}, {vr(QL+8,2)} offset:2048", "s_waitcnt lgkmcnt(0)")
            self.stamp("staged")
            e(self.vmwait("k01"))
        else:
            st = self.stage_q(QL, 0, "q0a", "q0b")
            e(st[0]); at(3); e(st[1:])
            self.stamp("staged")
            e(self.vmwait("k01" if c.k01 else f"r{self.need_round(-2, self.bars[0])}"), "s_barrier")
        self.stamp("b0")
        s0 = V_S
        k1 = self.k_tail(self.kb[0], 1280*self.kt[0]) + self.k_main(self.kb[0], 1280*self.kt[0]) if self.kt[0] != self.kt[-1] else []
        e(self.q_tail(0), self.k_tail(self.kb[-1], 0), self.k_main(self.kb[-1], 0), self.q_main(0)[:2])
        M2, MA, MB = self.m2b(s0, KB[self.kb[-1]][1], 0), self.m0(s0, KB[self.kb[-1]][0], 0, 0), self.m0(s0+16, KB[self.kb[-1]][0], 0, 1)
        e(M2)
        self.stamp("rd")
        e(self.q_main(0)[2:], k1)
        n0 = len(self.L); at(4); n4 = len(self.L) - n0
        if c.qs == -1:
            st = flat(self.stage_q(QL1, 1, "q1a", "q1b"))[:-1]
            e(st[:18], MA, MB, st[18:], "s_nop 1")
        else:
            e(f"s_nop {max(0, 17 - 2 - len(k1) - n4)}", MA, MB, "s_nop 7")
        self.stamp("qk0")

    def vadv(self, ntiles):
        if ntiles == 3: return [f"v_mad_u32_u24 v{V_AV}, v{V_M01}, s{S_INC}, v{V_AV}"]
        return [f"s_movk_i32 s{S_T0}, {1280*ntiles}", f"v_mad_u32_u24 v{V_AV}, v{V_M01}, s{S_T0}, v{V_AV}"]

    def fin_groups(self, p, add=True, check=True):
        KO = V_OK + 16*p; R = V_OS + 16*p; L = V_T + 2*p; T = V_T + 5; CK = V_T + 6; RC = V_QA + 2*p
        z = 3072*p
        g = {}
        g["rd"] = [f"ds_read_b128 {vr(R+4*k,4)}, v{V_XR} offset:{z+1024*k}" for k in (2, 0, 1)]
        g["add"] = [f"v_pk_add_f32 {vr(KO+k,2)}, {vr(KO+k,2)}, {vr(R+k,2)}" for k in (8, 10, 0, 2, 4, 6)]
        g["l1"] = [f"v_mov_b32 v{L}, v{KO+8}"]
        g["l2"] = [f"v_permlane32_swap_b32 v{KO+8}, v{L}"]
        g["l3"] = [f"v_rcp_f32 v{RC}, v{L}"]
        g["c1"] = [f"v_add_u32 v{T}, s{S_LO}, v{L}", f"v_mov_b32 v{CK}, 0", f"v_cmp_gt_u32 vcc, s{S_HI}, v{T}"] if check else ["s_nop 0"]
        g["mul"] = [f"v_pk_mul_f32 {vr(KO+k,2)}, {vr(KO+k,2)}, {vr(RC,2)} op_sel_hi:[1,0]" for k in range(0, 12, 2)]
        g["c2"] = [f"s_and_b64 {sr(S_OK,2)}, {sr(S_OK,2)}, vcc"] if check else []
        g["cvt"] = [f"v_cvt_pk_bf16_f32 v{KO+k}, v{KO+2*k}, v{KO+2*k+1}" for k in range(6)]
        g["wr"] = [f"ds_write_b64 v{V_XT}, {vr(KO,2)} offset:{z}", f"ds_write_b64 v{V_XT}, {vr(KO+2,2)} offset:{z+16}", f"ds_write_b64 v{V_XL}, {vr(KO+4,2)} offset:{z+32}"]
        g["dot"] = [f"v_dot2_f32_bf16 v{CK}, v{KO+k}, 0, v{CK}" for k in range(6)] if check else []
        g["rb"] = ["s_waitcnt lgkmcnt(0)", f"ds_read_b128 {vr(R,4)}, v{V_XR} offset:{z}", f"ds_read_b32 v{R+4}, v{V_X4} offset:{z+1024}"]
        g["c3"] = [f"v_cmp_o_f32 vcc, v{CK}, v{CK}"] if check else []
        g["c4"] = [f"s_and_b64 {sr(S_OK,2)}, {sr(S_OK,2)}, vcc"] if check else []
        fl = (" " + self.cfg.stflags) if self.cfg.stflags else ""
        g["st"] = [f"buffer_store_dwordx4 {vr(R,4)}, v{V_DMA}, {sr(S_O,4)}, s{S_OUT} offen offset:{2560*p}{fl}",
                   f"buffer_store_dword v{R+4}, v{V_L4}, {sr(S_O,4)}, s{S_OUT} offen offset:{2560*p+1024}{fl}"]
        return g
    def finish_both(self, A, B, add=True):
        fl = (" " + self.cfg.stflags) if self.cfg.stflags else ""
        RA, RB, RT = V_OS, V_OS + 16, V_OS + 4
        return [A["add"] if add else [], A["l1"], "s_nop 1", A["l2"], A["l3"], B["add"][:1] if add else "s_nop 0", A["mul"], A["cvt"], A["wr"],
                B["add"][1:] if add else [], B["l1"], "s_waitcnt lgkmcnt(0)", f"ds_read_b128 {vr(RA,4)}, v{V_XR}", B["l2"], B["l3"], "s_nop 0", B["mul"], B["cvt"], B["wr"],
                f"buffer_store_dwordx4 {vr(RA,4)}, v{V_DMA}, {sr(S_O,4)}, s{S_OUT} offen{fl}",
                "s_waitcnt lgkmcnt(0)", f"ds_read_b128 {vr(RB,4)}, v{V_XR} offset:3072", f"ds_read_b128 {vr(RT,4)}, v{V_X4} offset:1024",
                f"buffer_store_dwordx4 {vr(RB,4)}, v{V_DMA}, {sr(S_O,4)}, s{S_OUT} offen offset:2560{fl}",
                "s_mov_b32 exec_hi, 0", f"buffer_store_dwordx4 {vr(RT,4)}, v{V_GT}, {sr(S_O,4)}, s{S_OUT} offen offset:1024{fl}", "s_mov_b32 exec_hi, -1"]
    def publish(self, k):
        return ["s_mov_b64 exec, 1", f"ds_add_u32 v{V_L4}, v{V_M01} offset:{L_CNT[k]}", "s_mov_b64 exec, -1"]
    def poll_read(self, k): return f"ds_read_b32 v7, v{V_L4} offset:{L_CNT[k]}"
    def poll_test(self, k):
        self.retries.append(k)
        return [f"L_chk{k}:", f"v_readfirstlane_b32 s{S_T0}, v7", "s_nop 0", f"s_cmp_eq_u32 s{S_T0}, 8", f"s_cbranch_scc0 L_retry{k}"]
    def send(self, p):
        return [f"ds_write_b128 v{V_XW}, {vr(V_OS+16*p+4*k,4)} offset:{3072*p+1024*k}" for k in range(3)]

    def main(self):
        c = self.cfg
        e = self.e
        NP = self.l0
        qslot = c.ds - 2
        bars = self.bars
        allb = bars + ([c.loopbar] if c.loopbar else []) + [64]
        rounds = list(range(c.p0 + 1, 20))
        ext = {j: {} for j in range(NP)}
        lastk = max([-1] + [s for s in range(0, NP) if self.loads_in(s)[0] in (0, 1)])
        safeq = min(b for b in bars if b >= qslot + 2)
        safe = min(b for b in bars if b >= lastk + 2 and b >= safeq)
        if c.cnt == 2:
            assert bars == [1, c.chka + 1, NP] and c.chka % 2 == 1 and c.puba >= 2 and lastk < 1
            bars = [1, NP]
        j, k = c.dma_start, 0
        while rounds:
            n = rounds[0]
            lim = safe if n == 19 else (safeq if n >= 10 else 0)
            if j < lim:
                j += 1; k = 0; continue
            assert j < NP, "DMA rounds do not fit in the peeled slots"
            rounds.pop(0)
            ext[j].setdefault(c.dma_pos[k], []).extend(self.dma_round(n))
            k += 1
            if k == len(c.dma_pos): j += 1; k = 0
        vbase = 0
        def bar(b, after=None):
            nxt = min(x for x in allb if x > (b if after is None else after))
            return [self.vmwait(self.need_tag(b, nxt)), "s_barrier"]
        for j in range(NP):
            x = ext[j]
            if j in bars and j != qslot + 1: x[0] = bar(j)[:1 if c.fake & 4 else 2] + x.get(0, [])
            if j == qslot:
                def mark(n):
                    def f():
                        self.stamp(n); return "s_nop 0"
                    return [f] if n in c.stamps else []
                if c.qs >= 0: x[c.qs] = x.get(c.qs, []) + mark("pq") + self.stage_q(self.QL1, 1, "q1a", "q1b")[:-1] + mark("aq")
                x[c.qb] = x.get(c.qb, []) + ["s_waitcnt lgkmcnt(0)"] + (bar(j+1) if c.qb == 5 else bar(j, j+1)) + [self.q_tail(1)]
                self.pending = self.q_main(1)
                if c.qb < 5 or not c.spread:
                    x[min(5, c.qb + c.spread)] = x.get(min(5, c.qb + c.spread), []) + self.pending; self.pending = []
            if j == qslot + 1 and self.pending:
                x[6] = self.pending[:2]; x[7] = self.pending[2:]
            nextv = next((self.loads_in(s)[1] for s in range(j+1, 64) if self.loads_in(s)[1] is not None))
            adv = None
            if j == NP - 1: adv = nextv - vbase
            elif nextv - vbase > 2: adv = 3
            if adv: x[5] = x.get(5, []) + self.vadv(adv)
            if c.cnt and j == c.pub:
                x[5] = x.get(5, []) + [self.vmwait(self.need_tag(NP, c.loopbar))] + self.publish(0)
            if c.cnt == 2 and j == c.puba:
                x[c.pubap] = [self.vmwait(self.need_tag(c.chka + 1, NP))] + self.publish(3) + x.get(c.pubap, [])
            if c.cnt == 2 and j == c.chka:
                x[0] = x.get(0, []) + [self.poll_read(3)]
                x[4] = x.get(4, []) + self.poll_test(3)
            if c.cnt and j == NP - 1:
                x[0] = [self.poll_read(0)] + x.get(0, [])
                x[4] = x.get(4, []) + self.poll_test(0)
            skip = False
            if j == 0 and c.k01:
                k0, v0 = self.loads_in(0)
                ld = (self.k_tail(self.kb[1], 1280*k0) + self.k_main(self.kb[1], 1280*k0) if k0 is not None else []) + self.v_half(self.vb[1], 0, 1280*v0) + self.v_half(self.vb[1], 1, 1280*v0)
                if qslot == 0 and c.spread and c.qb < 5:
                    x[c.qb] = x[c.qb] + ld[:2]; x[5] = x.get(5, []) + ld[2:]
                elif qslot == 0 and c.spread:
                    x[5] = x[5] + ld[:2]; ext[1][8] = ld[2:]
                elif qslot == 0: x[c.qb] = x[c.qb] + ld
                else: x[c.b0x] = x.get(c.b0x, []) + bar(0) + ld
                skip = True
            self.slot(j, 0, vbase, x, late=((j == qslot + 1 and c.qb == 5) or (j == 1 and c.k01 and qslot > 0 and c.b0x == 5)), skip_loads=skip)
            if adv: vbase += adv
            self.stamp(f"s{j}")
        if NP in bars and not c.cnt: e(bar(NP)[:1 if c.fake & 1 else 2])
        e(f"s_mov_b32 s{S_CNT}, {self.niter}", f"s_mov_b32 s{S_LO}, 0xc0800000", f"s_mov_b32 s{S_HI}, 0x32000000")
        if c.pair:
            e(f"s_lshl_b32 s{S_T0}, s{S_W}, 4", f"s_add_u32 s{S_T0}, s{S_T0}, {L_FLAG}", f"s_xor_b32 s{S_T1}, s{S_T0}, 16",
              f"v_mov_b32 v{V_QL1}, s{S_T0}", f"v_mov_b32 v{V_QL1+1}, s{S_T1}")
        lq_entry = [set(q) for q in self.lq]
        n1 = (c.loopbar - NP)//6
        parts = [("L_loop", None)] if not (c.split and c.loopbar) else [("L_loop", self.niter - n1), ("L_loop2", 0)]
        for pi, (lab, stop) in enumerate(parts):
            if pi: e("s_waitcnt vmcnt(0)", "s_barrier")
            if c.align: e(f".p2align {c.align}")
            e(lab + ":")
            self.loop_start = len(self.L)
            for jj in range(6):
                j = NP + jj
                x = {}
                if jj == 0 and c.loopbar and stop is None:
                    x[0] = [f"s_cmp_eq_u32 s{S_CNT}, {self.niter - n1}", "s_cbranch_scc1 L_bar", "L_bar_ret:"]
                    if c.cnt: x[0][0] = f"s_bitcmp1_b32 {(1 << (self.niter - n1)) | (1 << (self.niter - 1))}, s{S_CNT}"
                if jj == 5:
                    x[4] = [f"s_sub_u32 s{S_CNT}, s{S_CNT}, 1"]
                    x[5] = [f"v_add_u32 v{V_AK}, s{S_INC}, v{V_AK}", self.vadv(3), f"s_cmp_lg_u32 s{S_CNT}, {stop or 0}", f"s_cbranch_scc1 {lab}"]
                self.slot(j, 0, vbase, x)
            assert self.lq == lq_entry, (self.lq, lq_entry)
            self.loop_end = len(self.L)
        kbase = 3*self.niter; vbase += 3*self.niter
        self.stamp("loop")
        early = c.de > 1
        A = self.fin_groups(0); B = self.fin_groups(1)
        sA = 64 - c.de
        for j in range(self.l1, 63):
            x = {}
            if early and j == sA:
                x[5] = []
            if early and j == sA + 1:
                sd = self.send(0)
                pre = ["s_barrier"] if c.loopbar < 27 else []
                x[1] = ["s_nop 0"] + pre + sd
                x[3] = ["s_waitcnt lgkmcnt(0)", "s_barrier", A["rd"]]
                x[4] = [A["add"], A["l1"]]
                x[5] = [A["l2"], A["l3"], A["c1"], A["mul"], A["c2"], A["cvt"], A["wr"], A["dot"]]
            self.slot(j, kbase, vbase, x)
        sc = V_S + 32*(63 % 3); sp = V_S + 32*(62 % 3)
        ex = [f"v_exp_f32 v{sc+i}, v{sc+i}" for i in range(32)]
        if c.prio: e(f"s_setprio {c.prio[63 % len(c.prio)] if c.p63 < 0 else c.p63}")
        pp = self.items[62][0]; va, vb = VB[self.vb[63]]; wa, wb = VB[self.vb[64]]
        if not early:
            sd0, sd1 = self.send(0), self.send(1)
            e(self.smf(0, 1, va, sp+16), ex[16:19], self.smf(0, 1, vb, sp+24), self.poll_read(2) if c.cnt else None, ex[19:22], self.smf(0, 0, va, sp),
              ex[22:26], self.smf(1, 1, wa, sc+16), ex[26:29], "s_barrier" if c.loopbar < 27 else None, self.poll_test(2) if c.cnt else None,
              sd0[0], ex[29:30], self.smf(0, 0, vb, sp+8), sd0[1], ex[30:32], sd0[2], ex[0:1], self.smf(1, 1, wb, sc+24),
              ex[1:10], self.smf(1, 0, wa, sc), ex[10:12], sd1)
            if c.pair:
                e(ex[12:14], "s_waitcnt lgkmcnt(0)", "s_mov_b64 exec, 1", f"ds_write_b32 v{V_QL1}, v{V_IDX}", "s_mov_b64 exec, -1",
                  f"ds_read_b32 v6, v{V_QL1+1}", ex[14:16], "s_nop 1", self.smf(1, 0, wb, sc+8),
                  "L_poll:", f"v_readfirstlane_b32 s{S_T0}, v6", f"ds_read_b32 v6, v{V_QL1+1}" if False else "s_nop 0", f"s_cmp_lg_u32 s{S_T0}, 0", "s_cbranch_scc0 L_wait", "L_ready:",
                  A["rd"], B["rd"])
            else:
                e("s_waitcnt lgkmcnt(0)", "s_barrier", A["rd"], ex[12:14], B["rd"], ex[14:16], "s_nop 1", self.smf(1, 0, wb, sc+8))
            self.stamp("s63")
            e(self.finish_both(A, B))
            self.stamp("fin")
            e(A["c1"], A["dot"], A["c2"], "s_nop 1", A["c3"], B["c1"][0], A["c4"], B["c1"][1:], B["dot"], B["c2"], "s_nop 1", B["c3"], "s_nop 1", B["c4"],
              f"s_andn2_b64 vcc, exec, {sr(S_OK,2)}", "s_cbranch_scc1 L_slow")
        else:
            k, v = self.loads_in(63)
            VA = self.v_half(self.vb[64], 0, (v-vbase)*1280); VBh = self.v_half(self.vb[64], 1, (v-vbase)*1280)
            sd1 = self.send(1)
            e(VA, VBh, self.smf(1, 1, va, sp+16), ex[16:20], self.smf(1, 1, vb, sp+24), A["c3"], ex[20:22], A["rb"], A["c4"], ex[22:26], self.smf(1, 1, wa, sc+16),
              ex[26:29], A["st"], self.smf(1, 0, va, sp), ex[29:32], ex[0:2], self.smf(1, 1, wb, sc+24), ex[2:6], self.smf(1, 0, vb, sp+8),
              ex[6:10], self.smf(1, 0, wa, sc), ex[10:12], sd1,
              "s_waitcnt lgkmcnt(0)", "s_barrier", B["rd"], ex[12:16], "s_nop 1", self.smf(1, 0, wb, sc+8), "s_nop 10")
            self.stamp("s63")
            e(B["add"], B["l1"], "s_nop 1", B["l2"], B["l3"], B["c1"], B["mul"], B["c2"], B["cvt"], B["wr"], B["dot"], B["rb"], "s_nop 0", B["c3"], "s_nop 1", B["c4"])
        assert not early
        if c.stamps: self.dump()
        e("L_end:", "s_endpgm")
        if c.pair:
            self.lq = []
            e("L_wait:", f"ds_read_b32 v6, v{V_QL1+1}", "s_waitcnt lgkmcnt(0)", "s_branch L_poll")
        if c.cnt:
            self.lq = []
            e("L_bar:", f"s_cmp_eq_u32 s{S_CNT}, {self.niter - 1}", "s_cbranch_scc0 L_bar2",
              "s_waitcnt vmcnt(0)", self.publish(1), "s_branch L_bar_ret",
              "L_bar2:", self.poll_read(1), self.poll_test(1), self.publish(2), "s_branch L_bar_ret")
            for k in self.retries:
                self.lq = []
                e(f"L_retry{k}:", self.poll_read(k), "s_waitcnt lgkmcnt(0)", f"s_branch L_chk{k}")
        elif c.loopbar and not c.split: e("L_bar:", "s_waitcnt vmcnt(0)", "s_barrier" if not c.fake & 2 else None, "s_branch L_bar_ret")

    def dump(self):
        e = self.e; c = self.cfg
        e("s_waitcnt vmcnt(0)")
        self.stamp("end")
        e("s_load_dwordx2 s[4:5], s[0:1], 40", "s_waitcnt lgkmcnt(0)", "s_mov_b32 s6, 0x1000000", "s_mov_b32 s7, 0x20000",
          f"s_lshl_b32 s8, s2, 3", f"s_add_u32 s8, s8, s{S_W}", "s_lshl_b32 s8, s8, 7", "v_mov_b32 v1, 0")
        for k in range(9):
            e(f"v_mov_b32 v2, s{S_STAMP+2*k}", f"v_mov_b32 v3, s{S_STAMP+2*k+1}", f"buffer_store_dwordx2 v[2:3], v1, s[4:7], s8 offen offset:{8*k}", "s_nop 1")
        e("s_memrealtime s[10:11]", "s_waitcnt lgkmcnt(0)", "v_mov_b32 v2, s10", "v_mov_b32 v3, s11", f"buffer_store_dwordx2 v[2:3], v1, s[4:7], s8 offen offset:72",
          "s_nop 1", "v_mov_b32 v2, s70", "v_mov_b32 v3, s71", f"buffer_store_dwordx2 v[2:3], v1, s[4:7], s8 offen offset:80")

    def slow(self):
        e = self.e
        self.lq = []
        S0 = V_S; BI = V_S + 32; G = V_S + 64; SV = V_S + 80; MA, MB = V_S + 90, V_S + 91; GV = V_S + 92
        SOFF = S_T0
        km, ktl = KB[0]
        m0a = self.m0(S0, km, 0, 0); m0b = self.m0(S0+16, km, 1, 0)
        kload = [f"buffer_load_dwordx2 {vr(ktl,2)}, v{V_ROW}, {sr(S_K,4)}, s{SOFF} offen offset:32",
                 f"buffer_load_dwordx4 {vr(km,4)}, v{V_ROW}, {sr(S_K,4)}, s{SOFF} offen"]
        e("L_slow:", "s_waitcnt vmcnt(0) lgkmcnt(0)",
          [f"v_accvgpr_read_b32 v{G+k}, {vr(V_QT+k)}" for k in range(4)], "s_nop 1",
          f"v_permlane32_swap_b32 v{G}, v{G+2}", f"v_permlane32_swap_b32 v{G+1}, v{G+3}", "s_nop 1",
          f"v_accvgpr_write_b32 {vr(V_QT)}, v{G}", f"v_accvgpr_write_b32 {vr(V_QT+1)}, v{G+1}",
          f"v_mov_b32 v{MA}, 0xff800000", f"v_mov_b32 v{MB}, 0xff800000",
          f"s_mov_b32 s{SOFF}, s{S_HB}", f"s_add_u32 s{S_T1}, s{S_HB}, {HEAD_BYTES}",
          "L_slow1:", kload, "s_waitcnt vmcnt(0)",
          self.m2b(S0, ktl, 0), "s_nop 15", "s_nop 1", m0a, m0b, "s_nop 11",
          [f"v_max3_f32 v{MA}, v{S0+2*k}, v{S0+2*k+1}, v{MA}" for k in range(8)],
          [f"v_max3_f32 v{MB}, v{S0+16+2*k}, v{S0+16+2*k+1}, v{MB}" for k in range(8)],
          f"s_add_u32 s{SOFF}, s{SOFF}, 1280", f"s_cmp_lt_u32 s{SOFF}, s{S_T1}", "s_cbranch_scc1 L_slow1",
          f"v_mov_b32 v{GV}, v{MA}", f"v_mov_b32 v{GV+1}, v{MB}", "s_nop 1",
          f"v_permlane32_swap_b32 v{MA}, v{GV}", f"v_permlane32_swap_b32 v{MB}, v{GV+1}", "s_nop 1",
          f"v_max_f32 v{MA}, v{MA}, v{GV}", f"v_max_f32 v{MB}, v{MB}, v{GV+1}",
          [[f"v_sub_f32 v{BI+k}, 0, v{MA}", f"v_sub_f32 v{BI+16+k}, 0, v{MB}"] for k in range(16)],
          [f"v_mov_b32 v{V_OK+k}, 0" for k in range(32)],
          f"v_and_b32 v{GV+1}, 31, v0", f"v_bfe_u32 v{GV}, v0, 5, 1", f"v_mul_u32_u24 v{GV}, 320, v{GV}",
          f"v_lshl_add_u32 v{GV}, v{GV+1}, 1, v{GV}",
          f"v_cmp_eq_u32 vcc, 20, v{GV+1}", f"v_mov_b32 v{GV+2}, 0x3f803f80", "s_nop 0",
          f"v_cndmask_b32 v{GV+2}, 0, v{GV+2}, vcc",
          [f"v_mov_b32 v{SV+k}, v{GV+2}" for k in range(8)],
          f"v_cmp_gt_u32 {sr(S_T2,2)}, 20, v{GV+1}",
          f"s_mov_b32 s{SOFF}, s{S_HB}",
          "L_slow2:", kload, f"s_mov_b64 exec, {sr(S_T2,2)}",
          [f"buffer_load_ushort v{G+8*s+jj}, v{GV}, {sr(S_V,4)}, s{SOFF} offen offset:{640*s+40*jj}" for s in range(2) for jj in range(8)],
          "s_waitcnt vmcnt(0)",
          [f"v_lshl_or_b32 v{SV+k}, v{G+2*k+1}, 16, v{G+2*k}" for k in range(8)],
          "s_mov_b64 exec, -1", "s_nop 3",
          self.m2b(S0, ktl, 0, c=vr(BI, 32)), "s_nop 15", "s_nop 1", m0a, m0b, "s_nop 11",
          [f"v_exp_f32 v{S0+k}, v{S0+k}" for k in range(32)],
          "s_nop 1", self.smf(0, 0, SV, S0), self.smf(1, 0, SV, S0+16), self.smf(0, 0, SV+4, S0+8), self.smf(1, 0, SV+4, S0+24),
          f"s_add_u32 s{SOFF}, s{SOFF}, 1280", f"s_cmp_lt_u32 s{SOFF}, s{S_T1}", "s_cbranch_scc1 L_slow2", "s_nop 11")
        e(self.finish_both(self.fin_groups(0), self.fin_groups(1), add=False))
        e("s_endpgm")

    def build(self):
        c = self.cfg
        self.plan()
        self.bars = sorted(set(c.bars + [c.ds - 1]))
        self.prologue(); self.main(); self.slow()
        hdr = open("cdna_kernels/%s.s.ref" % NAME).read().split("; @launch")[0]
        txt = hdr + f"; @launch grid=(256,1,1) block=(512,1,1) lds={LDS_BYTES}\n" + DOC
        txt += f'.amdgcn_target "amdgcn-amd-amdhsa--gfx950"\n.text\n.globl {NAME}_kernel\n.p2align 8\n.type {NAME}_kernel,@function\n{NAME}_kernel:\n'
        for x in self.L:
            txt += (x if not is_code(x) else "    " + x) + "\n"
        nv = (ACC_OFF + A_END + 7)//8*8
        assert nv <= 256
        txt += f""".section .rodata,"a"
.p2align 6
.amdhsa_kernel {NAME}_kernel
  .amdhsa_next_free_vgpr {nv}
  .amdhsa_next_free_sgpr 88
  .amdhsa_accum_offset {ACC_OFF}
  .amdhsa_group_segment_fixed_size 0
  .amdhsa_kernarg_size 48
  .amdhsa_user_sgpr_count 2
  .amdhsa_user_sgpr_kernarg_segment_ptr 1
  .amdhsa_system_sgpr_workgroup_id_x 1
.end_amdhsa_kernel
"""
        return txt

DOC = """; Fused attention, one workgroup (8 waves) per (head, 512-query quarter).
"""

TRANS = ("v_exp_f32", "v_rcp_f32")
def check(seq, label=""):
    errs = []
    P = [parse(x) for x in seq]
    for i, (op, ops) in enumerate(P):
        is_m = op.startswith("v_mfma") or op.startswith("v_smfmac")
        is_valu = op.startswith("v_") and not is_m
        if not (is_m or is_valu): continue
        D = regs_of(ops[0])
        if op.startswith("v_permlane32_swap"): D |= regs_of(ops[1])
        passes = 16 if "_2b_" in op else 8
        C = (D if op.startswith("v_smfmac") else regs_of(ops[3])) if is_m else set()
        dist = 0
        for k in range(i+1, min(i+40, len(P))):
            op2, ops2 = P[k]
            m2 = op2.startswith("v_mfma") or op2.startswith("v_smfmac")
            valu2 = op2.startswith("v_") and not m2
            mem2 = op2.startswith("ds_") or op2.startswith("buffer_")
            allr = [regs_of(x) for x in ops2]
            need = 0
            if is_m:
                if m2:
                    D2 = allr[0]; A2 = allr[1] | allr[2]
                    C2 = D2 if op2.startswith("v_smfmac") else allr[3]
                    if op2.startswith("v_smfmac"): A2 |= allr[3]
                    p2 = 16 if "_2b_" in op2 else 8
                    if A2 & D: need = max(need, {8: 12, 16: 20}[passes])
                    if C2 & D and not (C2 == D and p2 == passes): need = max(need, {8: 10, 16: 18}[passes])
                elif valu2 or mem2:
                    touched = set().union(*allr) if allr else set()
                    if touched & D: need = max(need, {8: 12, 16: 20}[passes])
                    if valu2 and (allr[0] & C): need = max(need, {8: 7, 16: 15}[passes])
            else:
                if m2:
                    rd = allr[1] | allr[2] | allr[3] | (allr[0] if op2.startswith("v_smfmac") else set())
                    if rd & D: need = 2
                elif valu2:
                    rd = set().union(*allr[1:]) if len(allr) > 1 else set()
                    if op2.startswith("v_permlane"): rd |= allr[0]
                    if rd & D:
                        if op in TRANS and op2 not in TRANS: need = max(need, 1)
                        if op2.startswith("v_permlane"): need = max(need, 2)
                        if op2.startswith(("v_readfirstlane", "v_readlane")): need = max(need, 1)
                        if op.startswith("v_dot2") and not (op2 == op and (allr[3] & D) and not ((allr[1] | allr[2]) & D)): need = max(need, 3)
                    if op.startswith("v_dot2") and op2 != op and (allr[0] & D): need = max(need, 3)
                if op.startswith(("v_cmp", "v_readfirstlane")):
                    if valu2 and any(ops[0] == x for x in ops2[1:]): need = max(need, 2)
                    if op2.startswith("buffer_") and any(ops[0] == x for x in ops2): need = max(need, 5)
                    if op2.startswith("s_") and any(ops[0] == x for x in ops2[1:]): need = max(need, 1)
            if need > dist:
                errs.append(f"{label}: [{i}] {seq[i]}  ->  [{k}] {seq[k]} : need {need} have {dist}")
            dist += (int(ops2[0]) + 1) if op2 == "s_nop" else 1
            if op2 in ("s_branch", "s_endpgm"): break
    for i, (op, ops) in enumerate(P):
        if op in ("buffer_store_dwordx4", "ds_write_b128"):
            d = regs_of(ops[0] if op.startswith("buffer") else ops[1])
            for k in (i+1, i+2):
                if k < len(P) and P[k][0].startswith("v_") and regs_of(P[k][1][0]) & d: errs.append(f"{label}: store WAR {seq[i]} -> {seq[k]}")
        if op.startswith("s_") and ops and ops[0] == "m0" and i+1 < len(P) and P[i+1][0].startswith("buffer_load") and " lds" in seq[i+1]:
            errs.append(f"{label}: m0 hazard {seq[i]} -> {seq[i+1]}")
    return errs

def main():
    ap = argparse.ArgumentParser()
    ap.add_argument("-o", default="cdna_kernels/%s.s" % NAME)
    ap.add_argument("--stamps", default="")
    ap.add_argument("--ds", type=int, default=2)
    ap.add_argument("--de", type=int, default=1)
    ap.add_argument("--pa", type=int, default=-1)
    ap.add_argument("--p0", type=int, default=1)
    ap.add_argument("--b2", type=int, default=0)
    ap.add_argument("--b3", type=int, default=4)
    ap.add_argument("--obar", type=int, default=2)
    ap.add_argument("--k01", type=int, default=1)
    ap.add_argument("--pb", type=int, default=0)
    ap.add_argument("--b0x", type=int, default=3)
    ap.add_argument("--mini", type=int, default=2)
    ap.add_argument("--bm", type=int, default=0)
    ap.add_argument("--qs", type=int, default=5)
    ap.add_argument("--qb", type=int, default=5)
    ap.add_argument("--spread", type=int, default=1)
    ap.add_argument("--p63", type=int, default=3)
    ap.add_argument("--hprio", default="3,2,2,1,1,0,3,2,2")
    ap.add_argument("--priv", type=int, default=0)
    ap.add_argument("--ordb", type=int, default=0)
    ap.add_argument("--split", type=int, default=0)
    ap.add_argument("--nobar63", type=int, default=0)
    ap.add_argument("--pair", type=int, default=1)
    ap.add_argument("--fake", type=int, default=0)
    ap.add_argument("--cnt", type=int, default=1)
    ap.add_argument("--pub", type=int, default=5)
    ap.add_argument("--puba", type=int, default=2)
    ap.add_argument("--pubap", type=int, default=0)
    ap.add_argument("--chka", type=int, default=3)
    ap.add_argument("--dma_start", type=int, default=0)
    ap.add_argument("--dma_pos", default="0,3")
    ap.add_argument("--bars", default="2,9")
    ap.add_argument("--loopbar", type=int, default=27)
    ap.add_argument("--prio", default="3,2,2,1,1,0")
    ap.add_argument("--align", type=int, default=0)
    ap.add_argument("--stflags", default="sc1")
    c = ap.parse_args()
    c.dma_pos = [int(x) for x in c.dma_pos.split(",")]
    c.hprio = [int(x) for x in c.hprio.split(",")] if c.hprio else []
    c.bars = [int(x) for x in c.bars.split(",")] if c.bars else []
    c.prio = [int(x) for x in c.prio.split(",")] if c.prio else []
    if c.stamps == "std": c.stamps = "start,setup,b0,s1,s8,loop,s63,fin,end"
    c.stamps = c.stamps.split(",") if c.stamps else []
    g = Gen(c)
    txt = g.build()
    code = lambda L: [x for x in L if is_code(x)]
    errs = check(code(g.L), "linear")
    errs += check(code(g.L[g.loop_start:g.loop_end] + g.L[g.loop_start:g.loop_end]), "loop")
    for x in errs: print("HAZARD", x)
    open(c.o, "w").write(txt)
    print("wrote", c.o, "instrs", len(code(g.L)), "vgprs", V_END, "acc_off", ACC_OFF, "agprs", A_END, "kb", [g.kb[s] for s in range(-1, 10)], "vb", [g.vb[s] for s in range(1, 10)], "tail kb", [g.kb[s] for s in range(55, 63)], "vb", [g.vb[s] for s in range(55, 65)])
main()
```

```python
import sys, math, struct, re, argparse

NAME = "standalone__fused_io_aware_attn__prompt"
def f32bits(x): return struct.unpack("<I", struct.pack("<f", x))[0]
AG = 1000
def vr(b, n=1):
    f = "v"
    if b >= AG: f, b = "a", b - AG
    return f"{f}[{b}:{b+n-1}]" if n > 1 else f"{f}{b}"
def sr(b, n=1): return f"s[{b}:{b+n-1}]" if n > 1 else f"s{b}"

V_T = 1
V_OK = 8
OSA = "--osa" in sys.argv
V_OS = AG + 48 if OSA else V_OK + 32
V_S = V_OK + (32 if OSA else 64)
V_R = V_S + 32
V_IDX = V_S + 96
V_AK = V_IDX + 1
V_AV = V_AK + 1
V_M01 = V_AV + 1
V_ROW = V_M01 + 1
V_DMA = V_ROW + 1
V_L4 = V_DMA + 1
V_XW = V_L4 + 1
V_QA = V_XW + 1
V_XR = V_QA + 5
V_XT = V_XR + 1
V_XL = V_XT + 1
V_X4 = V_XL + 1
V_GT = V_X4 + 1
V_QL1 = (V_GT + 2)//2*2
V_END = V_QL1 + 5
assert V_QA % 2 == 0
ACC_OFF = (V_END + 3)//4*4
V_Q = AG
V_QT = V_Q + 16
KB = [(V_QT + 4, V_QT + 8), (V_QT + 10, V_QT + 14)]
VB = [(V_QT + 16, V_QT + 20), (V_QT + 24, V_QT + 28)]
A_END = V_QT + 32 - AG + (32 if OSA else 0)
assert V_QT + 32 - AG == 48
def oacc(pair, i): return (V_OS if i else V_OK) + 16*pair

S_Q, S_K, S_V, S_O, S_D = 12, 16, 20, 24, 28
S_W, S_HB, S_G, S_OUT, S_REL, S_DOFF, S_LO, S_MSK, S_CNT, S_INC, S_T0, S_T1, S_T2, S_T3 = range(32, 46)
S_OK = 46
S_STAMP = 48
S_C2 = 72
S_HI = 74
S_MB = 75
S_B = 76
S_BO = 80
S_QG = 82
S_KP = 83
S_MV = 81
TOTAL_BYTES = 2*32*2048*20*2
HEAD_BYTES = 2048*40
HALF_BYTES = 1024*40
L_V = [4096, 122880]
L_K = [43008, 81920]
L_Q = 143360
L_FLAG = 3720
assert L_FLAG % 32 == 8
L_CNT = [L_FLAG + 128 + 16*k for k in range(4)]
LDS_BYTES = 163840

def regs_of(tok):
    m = re.fullmatch(r"([va])\[(\d+):(\d+)\]", tok)
    if m: return set(range((AG if m.group(1) == "a" else 0) + int(m.group(2)), (AG if m.group(1) == "a" else 0) + int(m.group(3)) + 1))
    m = re.fullmatch(r"([va])(\d+)", tok)
    if m: return {(AG if m.group(1) == "a" else 0) + int(m.group(2))}
    return set()
def parse(ins):
    p = ins.split(None, 1)
    op = p[0]; ops = [x.strip() for x in p[1].split(",")] if len(p) > 1 else []
    if ops: ops[-1] = ops[-1].split()[0] if ops[-1] else ops[-1]
    return op, ops
def is_code(x): return not (x.endswith(":") or x.startswith((".", ";")))

def flat(xs):
    out = []
    for x in xs:
        if isinstance(x, list): out += flat(x)
        elif x is not None: out.append(x)
    return out

class Gen:
    def __init__(self, cfg):
        self.cfg = cfg
        self.L = []
        self.vm = []
        self.retries = []
        self.lq = []
    def e(self, *xs):
        for x in flat(list(xs)):
            if callable(x): x = x()
            if isinstance(x, tuple):
                self.vm.append(x[2]); x = x[1]
            if is_code(x):
                op, ops = parse(x)
                if op == "s_waitcnt" and "lgkmcnt" in x:
                    n = int(re.search(r"lgkmcnt\((\d+)\)", x).group(1))
                    if n < len(self.lq): self.lq = self.lq[len(self.lq)-n:] if n else []
                elif op.startswith(("v_", "ds_", "buffer_")):
                    touched = set().union(*[regs_of(t) for t in ops]) if ops else set()
                    last = max((i for i, d in enumerate(self.lq) if d & touched), default=-1)
                    if last >= 0:
                        n = len(self.lq) - 1 - last
                        self.L.append(f"s_waitcnt lgkmcnt({n})")
                        self.lq = self.lq[last+1:]
                    if op.startswith("ds_read"): self.lq.append(regs_of(ops[0]))
                    elif op.startswith(("ds_write", "ds_add")): self.lq.append(set())
                    assert len(self.lq) <= 15, "lgkmcnt overflow"
            self.L.append(x)
    def VM(self, ins, tag): return ("VM", ins, tag)
    def vmwait(self, tag):
        def f():
            i = max(k for k, t in enumerate(self.vm) if t == tag)
            return f"s_waitcnt vmcnt({len(self.vm) - 1 - i})"
        return f
    def stamp(self, name):
        c = self.cfg
        if c.stamps and name in c.stamps:
            self.L.append(f"s_memtime {sr(S_STAMP + 2*c.stamps.index(name), 2)}")
        if c.stamps and name + "r" in c.stamps:
            self.L.append(f"s_memrealtime {sr(S_STAMP + 2*c.stamps.index(name + 'r'), 2)}")

    def dma_round(self, n):
        out = []
        if n >= 2 and n % 2 == 0 and not (self.cfg.mini == 1 and n == 2):
            out += [f"s_add_u32 m0, m0, 4096", f"s_add_u32 s{S_DOFF}, s{S_DOFF}, 4096"]
        off = (n & 1) * 2048
        out.append(self.VM(f"buffer_load_dwordx4 v{V_DMA}, {sr(S_D,4)}, s{S_DOFF} offen" + (f" offset:{off}" if off else "") + " lds", f"r{n}"))
        return out

    def qconv(self, regs):
        one = lambda r, t: [f"v_lshlrev_b32 v{t}, 16, v{r}", f"v_and_b32 v{t+1}, s{S_MSK}, v{r}",
                            f"v_pk_mul_f32 {vr(t,2)}, {vr(t,2)}, {sr(S_C2,2)}", f"v_cvt_pk_bf16_f32 v{r}, v{t}, v{t+1}"]
        out = []
        for i in range(0, len(regs) - 1, 2):
            for x, y in zip(one(regs[i], 2), one(regs[i+1], 4)): out += [x, y]
        if len(regs) & 1: out += one(regs[-1], 2)
        return out
    def stage_q(self, regs, p, ta, tb):
        W16, W4 = V_QA + 3, V_QA + 4
        return [self.vmwait(ta), self.qconv(list(range(regs, regs+4))), f"ds_write_b128 v{W16}, {vr(regs,4)} offset:{2560*p}",
                self.vmwait(tb), self.qconv([regs+4]), f"ds_write_b32 v{W4}, v{regs+4} offset:{2560*p+1024}", "s_waitcnt lgkmcnt(0)"]
    def rd4(self, dst, a, off):
        return [f"ds_read_b64 {vr(dst,2)}, v{a} offset:{off}", f"ds_read_b64 {vr(dst+2,2)}, v{a} offset:{off+8}"]
    def q_tail(self, p): return f"ds_read_b64 {vr(V_QT+2*p,2)}, v{V_QA+2} offset:{2560*p+32}"
    def q_main(self, p): return self.rd4(V_Q+8*p, V_QA, 2560*p) + self.rd4(V_Q+8*p+4, V_QA+1, 2560*p)
    def k_tail(self, b, off): return [f"ds_read_b64 {vr(KB[b][1],2)}, v{V_AK} offset:{off+32}"]
    def k_main(self, b, off): return self.rd4(KB[b][0], V_AK, off)
    def v_half(self, b, h, off):
        assert 0 <= off <= 2560
        r = VB[b][h]
        return [f"ds_read_b64_tr_b16 {vr(r,2)}, v{V_AV} offset:{off+640*h}", f"ds_read_b64_tr_b16 {vr(r+2,2)}, v{V_AV} offset:{off+640*h+160}"]

    def m2b(self, sbuf, kt, pair, c="0"):
        return f"v_mfma_f32_32x32x4_2b_bf16 {vr(sbuf,32)}, {vr(kt,2)}, {vr(V_QT+2*pair,2)}, {c} cbsz:1 abid:0"
    def m0(self, d, km, pair, i):
        return f"v_mfma_f32_32x32x16_bf16 {vr(d,16)}, {vr(km,4)}, {vr(V_Q+8*pair+4*i,4)}, {vr(d,16)}"
    def smf(self, pair, i, vreg, b):
        return f"v_smfmac_f32_32x32x32_bf16 {vr(oacc(pair,i),16)}, {vr(vreg,4)}, {vr(b,8)}, v{V_IDX}"

    def plan(self):
        c = self.cfg
        ds, de = c.ds, c.de
        items = [(0, t) for t in range(ds)] + [(1, t) for t in range(ds)]
        for t in range(ds, 32 - de): items += [(0, t), (1, t)]
        items += [(0, t) for t in range(32 - de, 32)] + [(1, t) for t in range(32 - de, 32)]
        assert len(items) == 64
        self.items = items
        self.niter = {1: 9, 3: 8}[de]
        self.l0 = 9; self.l1 = 9 + 6*self.niter
        assert 2*ds <= 8
        kt = {s: items[s+1][1] for s in range(-1, 63)}
        vt = {s: items[s-1][1] for s in range(1, 65)}
        kb, vb = {}, {}
        for s in range(self.l0 - 1, self.l1): kb[s] = 0; vb[s] = 0
        def reg(tt, s): return tt[s] == tt.get(s+1) or tt[s] == tt.get(s-1)
        for s in range(self.l0 - 2, -2, -1):
            kb[s] = kb[s+1] if (kt[s] == kt[s+1] or (kt.get(s-1) == kt[s])) else 1 - kb[s+1]
        for s in range(self.l0 - 2, 0, -1):
            vb[s] = vb[s+1] if (vt[s] == vt[s+1] or (vt.get(s-1) == vt[s])) else 1 - vb[s+1]
        for s in range(self.l1, 63):
            kb[s] = kb[s-1] if (kt[s] == kt[s-1] or kt.get(s-2) == kt[s-1]) else 1 - kb[s-1]
        for s in range(self.l1, 65):
            vb[s] = vb[s-1] if (vt[s] == vt[s-1] or vt.get(s-2) == vt[s-1]) else 1 - vb[s-1]
        self.kt, self.vt, self.kb, self.vb = kt, vt, kb, vb
        self.kl, self.vl = {}, {}
        kc, vc = {kb[-1]: kt[-1]}, {}
        for s in range(-1, 64):
            if s+1 in kt and kc.get(kb[s+1]) != kt[s+1]: self.kl[s] = kt[s+1]; kc[kb[s+1]] = kt[s+1]
            if s+1 in vt and vc.get(vb[s+1]) != vt[s+1]: self.vl[s] = vt[s+1]; vc[vb[s+1]] = vt[s+1]
    def loads_in(self, s):
        return self.kl.get(s), self.vl.get(s)
    def need_round(self, s0, s1):
        need = 0
        for s in range(s0, s1):
            k, v = self.loads_in(s)
            need = max([need] + [1280*(t+1) for t in (k, v) if t is not None])
        return (need + 2047)//2048 - 1

    def need_tag(self, s0, s1):
        if not self.cfg.mini: return f"r{self.need_round(s0, s1)}"
        tmax = max([0] + [t for s in range(s0, s1) for t in self.loads_in(s) if t is not None])
        if self.cfg.mini == 2: return "mA" if tmax <= 1 else f"r{self.need_round(s0, s1)}"
        if tmax <= 2: return "mB"
        if tmax == 3: return "mC"
        return f"r{self.need_round(s0, s1)}"

    def slot(self, j, kbase, vbase, X=None, late=False, skip_loads=False):
        X = X or {}
        x = lambda k: X.get(k, [])
        c = self.cfg
        sc = V_S + 32*(j % 3); sn = V_S + 32*((j+1) % 3); sp = V_S + 32*((j-1) % 3)
        ex = [f"v_exp_f32 v{sc+i}, v{sc+i}" for i in range(32)]
        M2 = MA = MB = S1 = S2 = S3 = S4 = None
        if j < 63:
            pn = self.items[j+1][0]; km, ktl = KB[self.kb[j]]
            M2, MA, MB = self.m2b(sn, ktl, pn), self.m0(sn, km, pn, 0), self.m0(sn+16, km, pn, 1)
        if j > 0:
            pp = self.items[j-1][0]; va, vb = VB[self.vb[j]]
            S1, S2, S3, S4 = self.smf(pp, 0, va, sp), self.smf(pp, 1, va, sp+16), self.smf(pp, 0, vb, sp+8), self.smf(pp, 1, vb, sp+24)
        k, v = self.loads_in(j)
        if skip_loads: k = v = None
        KT = KM = VA = VBh = []
        kjit = vjit = True
        if k is not None:
            b = self.kb[j+1]; KT = self.k_tail(b, (k-kbase)*1280); KM = self.k_main(b, (k-kbase)*1280); kjit = (b == self.kb[j])
        if v is not None:
            b = self.vb[j+1]; VA = self.v_half(b, 0, (v-vbase)*1280); VBh = self.v_half(b, 1, (v-vbase)*1280); vjit = (j > 0 and b == self.vb[j])
        a1 = [] if kjit else KM
        a2 = VA
        a3 = [] if vjit else VBh
        a4 = KM if kjit else []
        a5 = VBh if vjit else []
        if not (self.l0 <= j < self.l1): self.e(f"; ---- slot {j}: exp of (pair {self.items[j][0]}, key tile {self.items[j][1]}); scores of the next item; P.V of the previous one")
        else: self.e(f"; ---- loop slot {j - self.l0}")
        if c.prio: self.e(f"s_setprio {c.hprio[j] if (j < len(c.hprio)) else c.prio[j % len(c.prio)]}")
        if late:
            self.e(x(0), ex[0:2], x(8), ex[2:4], x(6), ex[4:6], M2, KT, x(7), ex[6:10], x(1), S1, a1, x(2), ex[10:14], S2, a2, ex[14:18], S3, x(3), ex[18:22],
                   MA, a3, ex[22:25], MB, a4, x(4), ex[25:28], S4, a5, ex[28:32], x(5))
        elif c.ordb and j >= self.l0 - 1 and vjit and kjit:
            self.e(x(0), M2, KT, ex[0:4], x(1), ex[4:8], S1, x(2), ex[8:12], S3, ex[12:16],
                   MA, x(3), ex[16:20], MB, a4, ex[20:24], S2, a2, x(4), ex[24:28], S4, a5, ex[28:32], x(5))
        else:
            self.e(x(0), M2, KT, ex[0:4], x(1), ex[4:8], S1, a1, x(2), ex[8:12], S2, a2, ex[12:16], "s_nop 1" if j == 0 else None,
                   MA, a3, x(3), ex[16:20], MB, a4, ex[20:24], S3, x(4), ex[24:28], S4, a5, ex[28:32], x(5))

    def prologue(self):
        c = self.cfg
        e = self.e
        assert c.pair and c.k01 and c.mini == 2 and c.ds == 2 and not c.priv
        scale = math.log2(math.e) / math.sqrt(20.0)
        QL = V_S + 64
        QL1 = self.QL1 = V_QL1
        A0, A1, A2, W16, W4 = range(V_QA, V_QA + 5)
        S_KR, S_VR, S_P = S_KP, S_QG, S_HI
        e("s_cmp_ge_u32 s2, 256", "s_cbranch_scc1 L_end",
          f"s_load_dwordx2 {sr(S_Q,2)}, s[0:1], 0", f"s_load_dwordx2 {sr(S_K,2)}, s[0:1], 8", f"s_load_dwordx2 {sr(S_V,2)}, s[0:1], 16")
        self.stamp("zero")
        if c.pf:
            e(f"s_getpc_b64 {sr(S_O,2)}", "L_pc:", f"s_mov_b32 s{S_O+2}, L_slow-L_pc", f"s_mov_b32 s{S_O+3}, 0x20000",
              f"s_lshl_b32 s3, s2, 5", f"s_and_b32 s3, s3, 0x1f00",
              f"v_and_b32 v1, 63, v0", f"v_lshlrev_b32 v1, 2, v1",
              self.VM(f"buffer_load_dword v{V_S+32}, v1, {sr(S_O,4)}, s3 offen", "pf"))
        self.stamp("start")
        if c.stamps: e("s_memrealtime s[70:71]")
        e(f"v_lshrrev_b32 v1, 6, v0",
          f"v_and_b32 v2, 63, v0",
          f"v_readfirstlane_b32 s{S_W}, v1",
          f"s_and_b32 s{S_T0}, s2, 7",
          f"s_lshl_b32 s{S_T0}, s{S_T0}, 3",
          f"s_lshr_b32 s{S_T1}, s2, 5",
          f"s_add_u32 s{S_T0}, s{S_T0}, s{S_T1}",
          f"s_mul_i32 s{S_HB}, s{S_T0}, {HEAD_BYTES}",
          f"s_bfe_u32 s{S_OUT}, s2, 0x20003",
          f"s_mulk_i32 s{S_OUT}, 20480",
          f"s_add_u32 s{S_OUT}, s{S_OUT}, s{S_HB}",
          f"v_lshlrev_b32 v{V_DMA}, 4, v2",
          f"v_lshlrev_b32 v{V_L4}, 2, v2",
          f"s_lshr_b32 s{S_P}, s{S_W}, 1",
          f"s_and_b32 s{S_T2}, s{S_W}, 1",
          f"s_mulk_i32 s{S_P}, 640",
          f"s_lshl_b32 s{S_G}, s{S_P}, 3",
          f"s_mul_i32 s{S_REL}, s{S_T2}, 1280",
          f"s_add_u32 s{S_REL}, s{S_REL}, s{S_G}",
          f"s_add_u32 s{S_OUT}, s{S_OUT}, s{S_REL}",
          f"s_mul_i32 s{S_DOFF}, s{S_T2}, {HALF_BYTES}",
          f"s_add_u32 s{S_DOFF}, s{S_DOFF}, s{S_HB}",
          f"s_add_u32 s{S_LO}, s{S_DOFF}, s{S_P}",
          f"s_mul_i32 s{S_KR}, s{S_T2}, {L_K[1]-L_K[0]}",
          f"s_add_u32 s{S_KR}, s{S_KR}, {L_K[0]}",
          f"s_add_u32 m0, s{S_KR}, s{S_P}",
          f"s_mov_b32 s{S_Q+2}, {TOTAL_BYTES}",
          f"s_mov_b32 s{S_Q+3}, 0x20000",
          f"s_mov_b64 {sr(S_K+2,2)}, {sr(S_Q+2,2)}",
          f"s_mov_b64 {sr(S_V+2,2)}, {sr(S_Q+2,2)}",
          f"s_mul_i32 s{S_VR}, s{S_T2}, {L_V[1]-L_V[0]}",
          f"s_addk_i32 s{S_VR}, {L_V[0]}",
          lambda: (self.stamp("pre"), "s_waitcnt lgkmcnt(0)")[1],
          self.VM(f"buffer_load_dwordx4 {vr(QL,4)}, v{V_DMA}, {sr(S_Q,4)}, s{S_OUT} offen", "q0a"),
          self.VM(f"buffer_load_dword v{QL+4}, v{V_L4}, {sr(S_Q,4)}, s{S_OUT} offen offset:1024", "q0b"),
          "s_mov_b32 exec_hi, 0xff",
          self.VM(f"buffer_load_dwordx4 v{V_DMA}, {sr(S_K,4)}, s{S_LO} offen lds", "k01"),
          f"s_add_u32 m0, s{S_VR}, s{S_P}")
        self.stamp("iss")
        e("s_barrier",
          self.VM(f"buffer_load_dwordx4 v{V_DMA}, {sr(S_V,4)}, s{S_LO} offen lds", "mA"),
          "s_mov_b32 exec_hi, -1",
          self.VM(f"buffer_load_dwordx4 {vr(QL1,4)}, v{V_DMA}, {sr(S_Q,4)}, s{S_OUT} offen offset:2560", "q1a"),
          self.VM(f"buffer_load_dword v{QL1+4}, v{V_L4}, {sr(S_Q,4)}, s{S_OUT} offen offset:3584", "q1b"),
          f"s_load_dwordx2 {sr(S_O,2)}, s[0:1], 24")
        e(
          f"s_lshl_b32 s{S_T3}, s{S_W}, 8", f"s_and_b32 s{S_T3}, s{S_T3}, 1024",
          f"s_add_u32 s{S_DOFF}, s{S_DOFF}, s{S_T3}",
          f"s_bitcmp1_b32 s{S_W}, 1",
          f"s_cselect_b32 s{S_T0}, s{S_VR}, s{S_KR}",
          f"s_cselect_b64 {sr(S_D,2)}, {sr(S_V,2)}, {sr(S_K,2)}",
          f"s_add_u32 m0, s{S_T0}, s{S_T3}",
          f"s_mov_b64 {sr(S_D+2,2)}, {sr(S_Q+2,2)}",
          f"s_mov_b64 {sr(S_O+2,2)}, {sr(S_Q+2,2)}",
          f"s_mov_b32 s{S_C2}, 0x{f32bits(scale):08x}", f"s_mov_b32 s{S_C2+1}, s{S_C2}",
          f"s_mov_b32 s{S_MSK}, 0xffff0000",
          f"v_mov_b32 v4, 0", f"v_mov_b32 v5, 0",
          f"v_and_b32 v3, 31, v0",
          f"v_bfe_u32 v6, v0, 5, 1",
          f"v_mfma_f32_32x32x4_2b_bf16 {vr(V_OK,32)}, v[4:5], v[4:5], 0",
          f"v_mfma_f32_32x32x4_2b_bf16 {vr(V_OS,32)}, v[4:5], v[4:5], 0",
          f"v_and_b32 v1, 1, v0",
          f"v_subrev_u32 v1, 1, v1",
          f"v_and_b32 v4, 0x3f80, v1",
          f"v_lshlrev_b32 v1, 3, v0",
          f"v_mul_u32_u24 v3, 40, v3",
          f"ds_write_b64 v1, v[4:5]",
          f"v_lshl_add_u32 v{V_ROW}, v6, 4, v3",
          f"v_add_u32 v{V_AK}, s{S_KR}, v{V_ROW}",
          f"s_add_u32 s{S_T0}, s{S_REL}, {L_Q}",
          f"v_add_u32 v{W16}, s{S_T0}, v{V_DMA}",
          f"v_add_u32 v{W4}, s{S_T0}, v{V_L4}",
          f"v_add_u32 v{A0}, s{S_T0}, v{V_ROW}",
          f"s_sub_u32 s{S_T3}, s{S_REL}, s{S_G}",
          f"s_sub_u32 s{S_T0}, s{S_T0}, s{S_T3}",
          f"s_lshl_b32 s{S_T1}, s{S_T2}, 5",
          f"v_xor_b32 v{A2}, s{S_T1}, v2",
          f"v_mad_u32_u24 v{A2}, v{A2}, 40, s{S_T0}",
          f"s_sub_u32 s{S_T0}, s{S_T0}, s{S_T3}",
          f"s_addk_i32 s{S_T0}, 1280",
          f"v_add_u32 v{A1}, s{S_T0}, v{V_ROW}",
          f"v_bfe_u32 v1, v0, 2, 2",
          f"v_lshl_add_u32 v1, v6, 3, v1",
          f"v_mad_u32_u24 v1, v1, 40, s{S_VR}",
          f"v_and_b32 v2, 19, v0",
          f"v_and_b32 v5, 3, v0",
          f"v_lshl_add_u32 v1, v2, 1, v1",
          f"v_mad_u32_u24 v1, v5, 6, v1",
          f"v_lshlrev_b32 v6, 6, v6",
          f"v_and_b32 v5, 2, v0",
          f"v_lshl_add_u32 v6, v5, 2, v6",
          f"v_cmp_lt_u32 vcc, 16, v2",
          f"v_add_u32 v6, 160, v6",
          f"s_movk_i32 s{S_INC}, 3840",
          f"v_cndmask_b32 v{V_AV}, v1, v6, vcc",
          f"v_cndmask_b32 v{V_M01}, 1, 0, vcc")
        late = [f"s_lshr_b32 s{S_T0}, s{S_W}, 1", f"s_mul_i32 s{S_T0}, s{S_T0}, 38912", f"s_mul_i32 s{S_T3}, s{S_T2}, 6144",
          f"s_sub_u32 s{S_T1}, s{S_T0}, s{S_T3}", f"s_add_u32 s{S_T0}, s{S_T0}, s{S_T3}",
          f"s_addk_i32 s{S_T0}, 6144", f"s_addk_i32 s{S_T1}, 12288",
          f"v_add_u32 v{V_XW}, s{S_T0}, v{V_DMA}",
          f"v_add_u32 v{V_XR}, s{S_T1}, v{V_DMA}",
          f"v_mad_u32_u24 v{V_XL}, v{V_L4}, 10, s{S_T1}",
          f"v_lshrrev_b32 v1, 4, v{V_L4}",
          f"v_and_b32 v1, 8, v1",
          f"v_sub_u32 v1, v{V_ROW}, v1",
          f"v_add_u32 v{V_XT}, s{S_T1}, v1",
          f"v_and_b32 v1, 0x100, v{V_DMA}",
          f"v_mad_u32_u24 v{V_GT}, v1, 9, v{V_DMA}",
          f"v_mad_u32_u24 v{V_X4}, v1, 11, v{V_XR}",
          f"v_mov_b32 v{V_IDX}, 0xdddd",
          f"s_mov_b64 {sr(S_OK,2)}, -1"]
        if not c.shadow: e(late)
        e(["s_nop 0"] * c.pad)
        self.stamp("setup")
        e(self.stage_q(QL, 0, "q0a", "q0b"))
        self.stamp("staged")
        e(self.vmwait("k01"), "s_barrier")
        self.stamp("b0")
        s0 = V_S
        k1 = self.k_tail(self.kb[0], 1280*self.kt[0]) + self.k_main(self.kb[0], 1280*self.kt[0])
        e(self.q_tail(0), self.k_tail(self.kb[-1], 0), self.k_main(self.kb[-1], 0), self.q_main(0)[:2])
        M2, MA, MB = self.m2b(s0, KB[self.kb[-1]][1], 0), self.m0(s0, KB[self.kb[-1]][0], 0, 0), self.m0(s0+16, KB[self.kb[-1]][0], 0, 1)
        e(M2, self.q_main(0)[2:], k1, [self.dma_round(n) for n in range(1, c.p0 + 1)])
        if c.shadow: e(late[:11], MA, MB, late[11:])
        else: e("s_nop 10", MA, MB, "s_nop 7")
        self.stamp("qk0")

    def vadv(self, ntiles):
        if ntiles == 3: return [f"v_mad_u32_u24 v{V_AV}, v{V_M01}, s{S_INC}, v{V_AV}"]
        return [f"s_movk_i32 s{S_T0}, {1280*ntiles}", f"v_mad_u32_u24 v{V_AV}, v{V_M01}, s{S_T0}, v{V_AV}"]

    def fin_groups(self, p, add=True, check=True):
        KO = V_OK + 16*p; R = V_R + 16*p; L = V_T + 2*p; T = V_T + 5; CK = V_T + 6; RC = V_QA + 2*p
        z = 3072*p
        g = {}
        g["rd"] = [f"ds_read_b128 {vr(R+4*k,4)}, v{V_XR} offset:{z+1024*k}" for k in (2, 0, 1)]
        g["add"] = [f"v_pk_add_f32 {vr(KO+k,2)}, {vr(KO+k,2)}, {vr(R+k,2)}" for k in (8, 10, 0, 2, 4, 6)]
        g["l1"] = [f"v_mov_b32 v{L}, v{KO+8}"]
        g["l2"] = [f"v_permlane32_swap_b32 v{KO+8}, v{L}"]
        g["l3"] = [f"v_rcp_f32 v{RC}, v{L}"]
        g["c1"] = [f"v_add_u32 v{T}, s{S_LO}, v{L}", f"v_mov_b32 v{CK}, 0", f"v_cmp_gt_u32 vcc, s{S_HI}, v{T}"] if check else ["s_nop 0"]
        g["mul"] = [f"v_pk_mul_f32 {vr(KO+k,2)}, {vr(KO+k,2)}, {vr(RC,2)} op_sel_hi:[1,0]" for k in range(0, 12, 2)]
        g["c2"] = [f"s_and_b64 {sr(S_OK,2)}, {sr(S_OK,2)}, vcc"] if check else []
        g["cvt"] = [f"v_cvt_pk_bf16_f32 v{KO+k}, v{KO+2*k}, v{KO+2*k+1}" for k in range(6)]
        g["wr"] = [f"ds_write_b64 v{V_XT}, {vr(KO,2)} offset:{z}", f"ds_write_b64 v{V_XT}, {vr(KO+2,2)} offset:{z+16}", f"ds_write_b64 v{V_XL}, {vr(KO+4,2)} offset:{z+32}"]
        g["dot"] = [f"v_dot2_f32_bf16 v{CK}, v{KO+k}, 0, v{CK}" for k in range(6)] if check else []
        g["rb"] = ["s_waitcnt lgkmcnt(0)", f"ds_read_b128 {vr(R,4)}, v{V_XR} offset:{z}", f"ds_read_b32 v{R+4}, v{V_X4} offset:{z+1024}"]
        g["c3"] = [f"v_cmp_o_f32 vcc, v{CK}, v{CK}"] if check else []
        g["c4"] = [f"s_and_b64 {sr(S_OK,2)}, {sr(S_OK,2)}, vcc"] if check else []
        fl = (" " + self.cfg.stflags) if self.cfg.stflags else ""
        g["st"] = [f"buffer_store_dwordx4 {vr(R,4)}, v{V_DMA}, {sr(S_O,4)}, s{S_OUT} offen offset:{2560*p}{fl}",
                   f"buffer_store_dword v{R+4}, v{V_L4}, {sr(S_O,4)}, s{S_OUT} offen offset:{2560*p+1024}{fl}"]
        return g
    def finish_both(self, A, B, add=True):
        fl = (" " + self.cfg.stflags) if self.cfg.stflags else ""
        RA, RB, RT = V_R, V_R + 16, V_R + 4
        return [A["add"] if add else [], A["l1"], "s_nop 1", A["l2"], A["l3"], B["add"][:1] if add else "s_nop 0", A["mul"], A["cvt"], A["wr"],
                B["add"][1:] if add else [], B["l1"], "s_waitcnt lgkmcnt(0)", f"ds_read_b128 {vr(RA,4)}, v{V_XR}", B["l2"], B["l3"], "s_nop 0", B["mul"], B["cvt"], B["wr"],
                f"buffer_store_dwordx4 {vr(RA,4)}, v{V_DMA}, {sr(S_O,4)}, s{S_OUT} offen{fl}",
                "s_waitcnt lgkmcnt(0)", f"ds_read_b128 {vr(RB,4)}, v{V_XR} offset:3072", f"ds_read_b128 {vr(RT,4)}, v{V_X4} offset:1024",
                f"buffer_store_dwordx4 {vr(RB,4)}, v{V_DMA}, {sr(S_O,4)}, s{S_OUT} offen offset:2560{fl}",
                "s_mov_b32 exec_hi, 0", f"buffer_store_dwordx4 {vr(RT,4)}, v{V_GT}, {sr(S_O,4)}, s{S_OUT} offen offset:1024{fl}", "s_mov_b32 exec_hi, -1"]
    def publish(self, k):
        return ["s_mov_b64 exec, 1", f"ds_add_u32 v{V_L4}, v{V_M01} offset:{L_CNT[k]}", "s_mov_b64 exec, -1"]
    def poll_read(self, k): return f"ds_read_b32 v7, v{V_L4} offset:{L_CNT[k]}"
    def poll_test(self, k):
        self.retries.append(k)
        return [f"L_chk{k}:", f"v_readfirstlane_b32 s{S_T0}, v7", "s_nop 0", f"s_cmp_eq_u32 s{S_T0}, 8", f"s_cbranch_scc0 L_retry{k}"]
    def send(self, p):
        return [f"ds_write_b128 v{V_XW}, {vr(V_OS+16*p+4*k,4)} offset:{3072*p+1024*k}" for k in range(3)]

    def main(self):
        c = self.cfg
        e = self.e
        NP = self.l0
        qslot = c.ds - 2
        bars = self.bars
        allb = bars + ([c.loopbar] if c.loopbar else []) + [64]
        rounds = list(range(c.p0 + 1, 20))
        ext = {j: {} for j in range(NP)}
        lastk = max([-1] + [s for s in range(0, NP) if self.loads_in(s)[0] in (0, 1)])
        safeq = min(b for b in bars if b >= qslot + 2)
        safe = min(b for b in bars if b >= lastk + 2 and b >= safeq)
        if c.cnt == 2:
            assert bars == [1, c.chka + 1, NP] and c.chka % 2 == 1 and c.puba >= 2 and lastk < 1
            bars = [1, NP]
        j, k = c.dma_start, 0
        while rounds:
            n = rounds[0]
            lim = safe if n == 19 else (safeq if n >= 10 else 0)
            if j < lim:
                j += 1; k = 0; continue
            assert j < NP, "DMA rounds do not fit in the peeled slots"
            rounds.pop(0)
            ext[j].setdefault(c.dma_pos[k], []).extend(self.dma_round(n))
            k += 1
            if k == len(c.dma_pos): j += 1; k = 0
        vbase = 0
        def bar(b, after=None):
            nxt = min(x for x in allb if x > (b if after is None else after))
            return [self.vmwait(self.need_tag(b, nxt)), "s_barrier"]
        for j in range(NP):
            x = ext[j]
            if j in bars and j != qslot + 1: x[0] = bar(j)[:1 if c.fake & 4 else 2] + x.get(0, [])
            if j == qslot:
                def mark(n):
                    def f():
                        self.stamp(n); return "s_nop 0"
                    return [f] if n in c.stamps else []
                if c.qs >= 0: x[c.qs] = x.get(c.qs, []) + mark("pq") + self.stage_q(self.QL1, 1, "q1a", "q1b")[:-1] + mark("aq")
                x[c.qb] = x.get(c.qb, []) + ["s_waitcnt lgkmcnt(0)"] + (bar(j+1) if c.qb == 5 else bar(j, j+1)) + [self.q_tail(1)]
                self.pending = self.q_main(1)
                if c.qb < 5 or not c.spread:
                    x[min(5, c.qb + c.spread)] = x.get(min(5, c.qb + c.spread), []) + self.pending; self.pending = []
            if j == qslot + 1 and self.pending:
                x[6] = self.pending[:2]; x[7] = self.pending[2:]
            nextv = next((self.loads_in(s)[1] for s in range(j+1, 64) if self.loads_in(s)[1] is not None))
            adv = None
            if j == NP - 1: adv = nextv - vbase
            elif nextv - vbase > 2: adv = 3
            if adv: x[5] = x.get(5, []) + self.vadv(adv)
            if c.cnt and j == c.pub:
                x[5] = x.get(5, []) + [self.vmwait(self.need_tag(NP, c.loopbar))] + self.publish(0)
            if c.cnt == 2 and j == c.puba:
                x[c.pubap] = [self.vmwait(self.need_tag(c.chka + 1, NP))] + self.publish(3) + x.get(c.pubap, [])
            if c.cnt == 2 and j == c.chka:
                x[0] = x.get(0, []) + [self.poll_read(3)]
                x[4] = x.get(4, []) + self.poll_test(3)
            if c.cnt and j == NP - 1:
                x[0] = [self.poll_read(0)] + x.get(0, [])
                x[4] = x.get(4, []) + self.poll_test(0)
            skip = False
            if j == 0 and c.k01:
                k0, v0 = self.loads_in(0)
                ld = (self.k_tail(self.kb[1], 1280*k0) + self.k_main(self.kb[1], 1280*k0) if k0 is not None else []) + self.v_half(self.vb[1], 0, 1280*v0) + self.v_half(self.vb[1], 1, 1280*v0)
                if qslot == 0 and c.spread and c.qb < 5:
                    x[c.qb] = x[c.qb] + ld[:2]; x[5] = x.get(5, []) + ld[2:]
                elif qslot == 0 and c.spread:
                    x[5] = x[5] + ld[:2]; ext[1][8] = ld[2:]
                elif qslot == 0: x[c.qb] = x[c.qb] + ld
                else: x[c.b0x] = x.get(c.b0x, []) + bar(0) + ld
                skip = True
            self.slot(j, 0, vbase, x, late=((j == qslot + 1 and c.qb == 5) or (j == 1 and c.k01 and qslot > 0 and c.b0x == 5)), skip_loads=skip)
            if adv: vbase += adv
            self.stamp(f"s{j}")
        if NP in bars and not c.cnt: e(bar(NP)[:1 if c.fake & 1 else 2])
        e(f"s_mov_b32 s{S_CNT}, {self.niter}", f"s_mov_b32 s{S_LO}, 0xc0800000", f"s_mov_b32 s{S_HI}, 0x32000000")
        if c.pair:
            e(f"s_lshl_b32 s{S_T0}, s{S_W}, 4", f"s_add_u32 s{S_T0}, s{S_T0}, {L_FLAG}", f"s_xor_b32 s{S_T1}, s{S_T0}, 16",
              f"v_mov_b32 v{V_QL1}, s{S_T0}", f"v_mov_b32 v{V_QL1+1}, s{S_T1}")
        lq_entry = [set(q) for q in self.lq]
        n1 = (c.loopbar - NP)//6
        parts = [("L_loop", None)] if not (c.split and c.loopbar) else [("L_loop", self.niter - n1), ("L_loop2", 0)]
        for pi, (lab, stop) in enumerate(parts):
            if pi: e("s_waitcnt vmcnt(0)", "s_barrier")
            if c.align: e(f".p2align {c.align}")
            e(lab + ":")
            self.loop_start = len(self.L)
            for jj in range(6):
                j = NP + jj
                x = {}
                if jj == 0 and c.loopbar and stop is None:
                    x[0] = [f"s_cmp_eq_u32 s{S_CNT}, {self.niter - n1}", "s_cbranch_scc1 L_bar", "L_bar_ret:"]
                    if c.cnt: x[0][0] = f"s_bitcmp1_b32 {(1 << (self.niter - n1)) | (1 << (self.niter - 1))}, s{S_CNT}"
                if jj == 5:
                    x[4] = [f"s_sub_u32 s{S_CNT}, s{S_CNT}, 1"]
                    x[5] = [f"v_add_u32 v{V_AK}, s{S_INC}, v{V_AK}", self.vadv(3), f"s_cmp_lg_u32 s{S_CNT}, {stop or 0}", f"s_cbranch_scc1 {lab}"]
                self.slot(j, 0, vbase, x)
            assert self.lq == lq_entry, (self.lq, lq_entry)
            self.loop_end = len(self.L)
        kbase = 3*self.niter; vbase += 3*self.niter
        self.stamp("loop")
        early = c.de > 1
        A = self.fin_groups(0); B = self.fin_groups(1)
        sA = 64 - c.de
        for j in range(self.l1, 63):
            x = {}
            if early and j == sA:
                x[5] = []
            if early and j == sA + 1:
                sd = self.send(0)
                pre = ["s_barrier"] if c.loopbar < 27 else []
                x[1] = ["s_nop 0"] + pre + sd
                x[3] = ["s_waitcnt lgkmcnt(0)", "s_barrier", A["rd"]]
                x[4] = [A["add"], A["l1"]]
                x[5] = [A["l2"], A["l3"], A["c1"], A["mul"], A["c2"], A["cvt"], A["wr"], A["dot"]]
            self.slot(j, kbase, vbase, x)
        sc = V_S + 32*(63 % 3); sp = V_S + 32*(62 % 3)
        ex = [f"v_exp_f32 v{sc+i}, v{sc+i}" for i in range(32)]
        if c.prio: e(f"s_setprio {c.prio[63 % len(c.prio)] if c.p63 < 0 else c.p63}")
        pp = self.items[62][0]; va, vb = VB[self.vb[63]]; wa, wb = VB[self.vb[64]]
        if not early:
            sd0, sd1 = self.send(0), self.send(1)
            e(self.smf(0, 1, va, sp+16), ex[16:19], self.smf(0, 1, vb, sp+24), self.poll_read(2) if c.cnt else None, ex[19:22], self.smf(0, 0, va, sp),
              ex[22:26], self.smf(1, 1, wa, sc+16), ex[26:29], "s_barrier" if c.loopbar < 27 else None, self.poll_test(2) if c.cnt else None,
              sd0[0], ex[29:30], self.smf(0, 0, vb, sp+8), sd0[1], ex[30:32], sd0[2], ex[0:1], self.smf(1, 1, wb, sc+24),
              ex[1:10], self.smf(1, 0, wa, sc), ex[10:12], sd1)
            if c.pair:
                e(ex[12:14], "s_waitcnt lgkmcnt(0)", "s_mov_b64 exec, 1", f"ds_write_b32 v{V_QL1}, v{V_IDX}", "s_mov_b64 exec, -1",
                  f"ds_read_b32 v6, v{V_QL1+1}", ex[14:16], "s_nop 1", self.smf(1, 0, wb, sc+8),
                  "L_poll:", f"v_readfirstlane_b32 s{S_T0}, v6", f"ds_read_b32 v6, v{V_QL1+1}" if False else "s_nop 0", f"s_cmp_lg_u32 s{S_T0}, 0", "s_cbranch_scc0 L_wait", "L_ready:",
                  A["rd"], B["rd"])
            else:
                e("s_waitcnt lgkmcnt(0)", "s_barrier", A["rd"], ex[12:14], B["rd"], ex[14:16], "s_nop 1", self.smf(1, 0, wb, sc+8))
            self.stamp("s63")
            e(self.finish_both(A, B))
            self.stamp("fin")
            e(A["c1"], A["dot"], A["c2"], "s_nop 1", A["c3"], B["c1"][0], A["c4"], B["c1"][1:], B["dot"], B["c2"], "s_nop 1", B["c3"], "s_nop 1", B["c4"],
              f"s_andn2_b64 vcc, exec, {sr(S_OK,2)}", "s_cbranch_scc1 L_slow")
        else:
            k, v = self.loads_in(63)
            VA = self.v_half(self.vb[64], 0, (v-vbase)*1280); VBh = self.v_half(self.vb[64], 1, (v-vbase)*1280)
            sd1 = self.send(1)
            e(VA, VBh, self.smf(1, 1, va, sp+16), ex[16:20], self.smf(1, 1, vb, sp+24), A["c3"], ex[20:22], A["rb"], A["c4"], ex[22:26], self.smf(1, 1, wa, sc+16),
              ex[26:29], A["st"], self.smf(1, 0, va, sp), ex[29:32], ex[0:2], self.smf(1, 1, wb, sc+24), ex[2:6], self.smf(1, 0, vb, sp+8),
              ex[6:10], self.smf(1, 0, wa, sc), ex[10:12], sd1,
              "s_waitcnt lgkmcnt(0)", "s_barrier", B["rd"], ex[12:16], "s_nop 1", self.smf(1, 0, wb, sc+8), "s_nop 10")
            self.stamp("s63")
            e(B["add"], B["l1"], "s_nop 1", B["l2"], B["l3"], B["c1"], B["mul"], B["c2"], B["cvt"], B["wr"], B["dot"], B["rb"], "s_nop 0", B["c3"], "s_nop 1", B["c4"])
        assert not early
        if c.probe:
            a, b = c.stamps.index(c.probe.split(",")[0]), c.stamps.index(c.probe.split(",")[1])
            ra = f"s{S_STAMP+2*a}"
            e("s_waitcnt vmcnt(0)", "s_memrealtime s[4:5]", "s_waitcnt lgkmcnt(0)",
              f"s_sub_u32 s6, s{S_STAMP+2*b}, {ra}", "s_mul_i32 s6, s6, 10", "s_add_u32 s6, s6, s4",
              "L_spin:", "s_memrealtime s[8:9]", "s_waitcnt lgkmcnt(0)", "s_sub_u32 s7, s8, s6", "s_cmp_lt_i32 s7, 0", "s_cbranch_scc1 L_spin")
        elif c.stamps: self.dump()
        e("L_end:", "s_endpgm")
        if c.pair:
            self.lq = []
            e("L_wait:", f"ds_read_b32 v6, v{V_QL1+1}", "s_waitcnt lgkmcnt(0)", "s_branch L_poll")
        if c.cnt:
            self.lq = []
            e("L_bar:", f"s_cmp_eq_u32 s{S_CNT}, {self.niter - 1}", "s_cbranch_scc0 L_bar2",
              "s_waitcnt vmcnt(0)", self.publish(1), "s_branch L_bar_ret",
              "L_bar2:", self.poll_read(1), self.poll_test(1), self.publish(2), "s_branch L_bar_ret")
            for k in self.retries:
                self.lq = []
                e(f"L_retry{k}:", self.poll_read(k), "s_waitcnt lgkmcnt(0)", f"s_branch L_chk{k}")
        elif c.loopbar and not c.split: e("L_bar:", "s_waitcnt vmcnt(0)", "s_barrier" if not c.fake & 2 else None, "s_branch L_bar_ret")

    def dump(self):
        e = self.e; c = self.cfg
        e("s_waitcnt vmcnt(0)")
        self.stamp("end")
        e("s_load_dwordx2 s[4:5], s[0:1], 40", "s_waitcnt lgkmcnt(0)", "s_mov_b32 s6, 0x1000000", "s_mov_b32 s7, 0x20000",
          f"s_lshl_b32 s8, s2, 3", f"s_add_u32 s8, s8, s{S_W}", "s_lshl_b32 s8, s8, 7", "v_mov_b32 v1, 0")
        for k in range(9):
            e(f"v_mov_b32 v2, s{S_STAMP+2*k}", f"v_mov_b32 v3, s{S_STAMP+2*k+1}", f"buffer_store_dwordx2 v[2:3], v1, s[4:7], s8 offen offset:{8*k}", "s_nop 1")
        e("s_memrealtime s[10:11]", "s_waitcnt lgkmcnt(0)", "v_mov_b32 v2, s10", "v_mov_b32 v3, s11", f"buffer_store_dwordx2 v[2:3], v1, s[4:7], s8 offen offset:72",
          "s_nop 1", "v_mov_b32 v2, s70", "v_mov_b32 v3, s71", f"buffer_store_dwordx2 v[2:3], v1, s[4:7], s8 offen offset:80")

    def slow(self):
        e = self.e
        self.lq = []
        S0 = V_S; BI = V_S + 32; G = V_S + 64; SV = V_S + 80; MA, MB = V_S + 90, V_S + 91; GV = V_S + 92
        SOFF = S_T0
        km, ktl = KB[0]
        m0a = self.m0(S0, km, 0, 0); m0b = self.m0(S0+16, km, 1, 0)
        kload = [f"buffer_load_dwordx2 {vr(ktl,2)}, v{V_ROW}, {sr(S_K,4)}, s{SOFF} offen offset:32",
                 f"buffer_load_dwordx4 {vr(km,4)}, v{V_ROW}, {sr(S_K,4)}, s{SOFF} offen"]
        e("; ---- fallback: pass 1 finds the true row max, pass 2 accumulates exp2(s - max) . V", "L_slow:", "s_waitcnt vmcnt(0) lgkmcnt(0)",
          [f"v_accvgpr_read_b32 v{G+k}, {vr(V_QT+k)}" for k in range(4)], "s_nop 1",
          f"v_permlane32_swap_b32 v{G}, v{G+2}", f"v_permlane32_swap_b32 v{G+1}, v{G+3}", "s_nop 1",
          f"v_accvgpr_write_b32 {vr(V_QT)}, v{G}", f"v_accvgpr_write_b32 {vr(V_QT+1)}, v{G+1}",
          f"v_mov_b32 v{MA}, 0xff800000", f"v_mov_b32 v{MB}, 0xff800000",
          f"s_mov_b32 s{SOFF}, s{S_HB}", f"s_add_u32 s{S_T1}, s{S_HB}, {HEAD_BYTES}",
          "L_slow1:", kload, "s_waitcnt vmcnt(0)",
          self.m2b(S0, ktl, 0), "s_nop 15", "s_nop 1", m0a, m0b, "s_nop 11",
          [f"v_max3_f32 v{MA}, v{S0+2*k}, v{S0+2*k+1}, v{MA}" for k in range(8)],
          [f"v_max3_f32 v{MB}, v{S0+16+2*k}, v{S0+16+2*k+1}, v{MB}" for k in range(8)],
          f"s_add_u32 s{SOFF}, s{SOFF}, 1280", f"s_cmp_lt_u32 s{SOFF}, s{S_T1}", "s_cbranch_scc1 L_slow1",
          f"v_mov_b32 v{GV}, v{MA}", f"v_mov_b32 v{GV+1}, v{MB}", "s_nop 1",
          f"v_permlane32_swap_b32 v{MA}, v{GV}", f"v_permlane32_swap_b32 v{MB}, v{GV+1}", "s_nop 1",
          f"v_max_f32 v{MA}, v{MA}, v{GV}", f"v_max_f32 v{MB}, v{MB}, v{GV+1}",
          [[f"v_sub_f32 v{BI+k}, 0, v{MA}", f"v_sub_f32 v{BI+16+k}, 0, v{MB}"] for k in range(16)],
          [f"v_mov_b32 v{V_OK+k}, 0" for k in range(32)],
          f"v_and_b32 v{GV+1}, 31, v0", f"v_bfe_u32 v{GV}, v0, 5, 1", f"v_mul_u32_u24 v{GV}, 320, v{GV}",
          f"v_lshl_add_u32 v{GV}, v{GV+1}, 1, v{GV}",
          f"v_cmp_eq_u32 vcc, 20, v{GV+1}", f"v_mov_b32 v{GV+2}, 0x3f803f80", "s_nop 0",
          f"v_cndmask_b32 v{GV+2}, 0, v{GV+2}, vcc",
          [f"v_mov_b32 v{SV+k}, v{GV+2}" for k in range(8)],
          f"v_cmp_gt_u32 {sr(S_T2,2)}, 20, v{GV+1}",
          f"s_mov_b32 s{SOFF}, s{S_HB}",
          "L_slow2:", kload, f"s_mov_b64 exec, {sr(S_T2,2)}",
          [f"buffer_load_ushort v{G+8*s+jj}, v{GV}, {sr(S_V,4)}, s{SOFF} offen offset:{640*s+40*jj}" for s in range(2) for jj in range(8)],
          "s_waitcnt vmcnt(0)",
          [f"v_lshl_or_b32 v{SV+k}, v{G+2*k+1}, 16, v{G+2*k}" for k in range(8)],
          "s_mov_b64 exec, -1", "s_nop 3",
          self.m2b(S0, ktl, 0, c=vr(BI, 32)), "s_nop 15", "s_nop 1", m0a, m0b, "s_nop 11",
          [f"v_exp_f32 v{S0+k}, v{S0+k}" for k in range(32)],
          "s_nop 1", self.smf(0, 0, SV, S0), self.smf(1, 0, SV, S0+16), self.smf(0, 0, SV+4, S0+8), self.smf(1, 0, SV+4, S0+24),
          f"s_add_u32 s{SOFF}, s{SOFF}, 1280", f"s_cmp_lt_u32 s{SOFF}, s{S_T1}", "s_cbranch_scc1 L_slow2", "s_nop 11")
        e(self.finish_both(self.fin_groups(0), self.fin_groups(1), add=False))
        e("s_endpgm")

    def build(self):
        c = self.cfg
        self.plan()
        self.bars = sorted(set(c.bars + [c.ds - 1]))
        self.prologue(); self.main(); self.slow()
        hdr = open("cdna_kernels/%s.s.ref" % NAME).read().split("; @launch")[0]
        txt = hdr + f"; @launch grid=(256,1,1) block=(512,1,1) lds={LDS_BYTES}\n" + DOC
        txt += f'.amdgcn_target "amdgcn-amd-amdhsa--gfx950"\n.text\n.globl {NAME}_kernel\n.p2align 8\n.type {NAME}_kernel,@function\n{NAME}_kernel:\n'
        for x in self.L:
            txt += (x if not is_code(x) else "    " + x) + "\n"
        nv = (ACC_OFF + A_END + 7)//8*8
        assert nv <= 256
        txt += f""".section .rodata,"a"
.p2align 6
.amdhsa_kernel {NAME}_kernel
  .amdhsa_next_free_vgpr {nv}
  .amdhsa_next_free_sgpr 88
  .amdhsa_accum_offset {ACC_OFF}
  .amdhsa_group_segment_fixed_size 0
  .amdhsa_kernarg_size 48
  .amdhsa_user_sgpr_count 2
  .amdhsa_user_sgpr_kernarg_segment_ptr 1
  .amdhsa_system_sgpr_workgroup_id_x 1
.end_amdhsa_kernel
"""
        return txt

DOC = """; Fused attention, one workgroup (8 waves) per (head, 512-query quarter); K and V of the head stay in LDS.
"""

TRANS = ("v_exp_f32", "v_rcp_f32")
def check(seq, label=""):
    errs = []
    P = [parse(x) for x in seq]
    for i, (op, ops) in enumerate(P):
        is_m = op.startswith("v_mfma") or op.startswith("v_smfmac")
        is_valu = op.startswith("v_") and not is_m
        if not (is_m or is_valu): continue
        D = regs_of(ops[0])
        if op.startswith("v_permlane32_swap"): D |= regs_of(ops[1])
        passes = 16 if "_2b_" in op else 8
        C = (D if op.startswith("v_smfmac") else regs_of(ops[3])) if is_m else set()
        dist = 0
        for k in range(i+1, min(i+40, len(P))):
            op2, ops2 = P[k]
            m2 = op2.startswith("v_mfma") or op2.startswith("v_smfmac")
            valu2 = op2.startswith("v_") and not m2
            mem2 = op2.startswith("ds_") or op2.startswith("buffer_")
            allr = [regs_of(x) for x in ops2]
            need = 0
            if is_m:
                if m2:
                    D2 = allr[0]; A2 = allr[1] | allr[2]
                    C2 = D2 if op2.startswith("v_smfmac") else allr[3]
                    if op2.startswith("v_smfmac"): A2 |= allr[3]
                    p2 = 16 if "_2b_" in op2 else 8
                    if A2 & D: need = max(need, {8: 12, 16: 20}[passes])
                    if C2 & D and not (C2 == D and p2 == passes): need = max(need, {8: 10, 16: 18}[passes])
                elif valu2 or mem2:
                    touched = set().union(*allr) if allr else set()
                    if touched & D: need = max(need, {8: 12, 16: 20}[passes])
                    if valu2 and (allr[0] & C): need = max(need, {8: 7, 16: 15}[passes])
            else:
                if m2:
                    rd = allr[1] | allr[2] | allr[3] | (allr[0] if op2.startswith("v_smfmac") else set())
                    if rd & D: need = 2
                elif valu2:
                    rd = set().union(*allr[1:]) if len(allr) > 1 else set()
                    if op2.startswith("v_permlane"): rd |= allr[0]
                    if rd & D:
                        if op in TRANS and op2 not in TRANS: need = max(need, 1)
                        if op2.startswith("v_permlane"): need = max(need, 2)
                        if op2.startswith(("v_readfirstlane", "v_readlane")): need = max(need, 1)
                        if op.startswith("v_dot2") and not (op2 == op and (allr[3] & D) and not ((allr[1] | allr[2]) & D)): need = max(need, 3)
                    if op.startswith("v_dot2") and op2 != op and (allr[0] & D): need = max(need, 3)
                if op.startswith(("v_cmp", "v_readfirstlane")):
                    if valu2 and any(ops[0] == x for x in ops2[1:]): need = max(need, 2)
                    if op2.startswith("buffer_") and any(ops[0] == x for x in ops2): need = max(need, 5)
                    if op2.startswith("s_") and any(ops[0] == x for x in ops2[1:]): need = max(need, 1)
            if need > dist:
                errs.append(f"{label}: [{i}] {seq[i]}  ->  [{k}] {seq[k]} : need {need} have {dist}")
            dist += (int(ops2[0]) + 1) if op2 == "s_nop" else 1
            if op2 in ("s_branch", "s_endpgm"): break
    for i, (op, ops) in enumerate(P):
        if op in ("buffer_store_dwordx4", "ds_write_b128"):
            d = regs_of(ops[0] if op.startswith("buffer") else ops[1])
            for k in (i+1, i+2):
                if k < len(P) and P[k][0].startswith("v_") and regs_of(P[k][1][0]) & d: errs.append(f"{label}: store WAR {seq[i]} -> {seq[k]}")
        if op.startswith("s_") and ops and ops[0] == "m0" and i+1 < len(P) and P[i+1][0].startswith("buffer_load") and " lds" in seq[i+1]:
            errs.append(f"{label}: m0 hazard {seq[i]} -> {seq[i+1]}")
    return errs

def main():
    ap = argparse.ArgumentParser()
    ap.add_argument("-o", default="cdna_kernels/%s.s" % NAME)
    ap.add_argument("--stamps", default="")
    ap.add_argument("--ds", type=int, default=2)
    ap.add_argument("--de", type=int, default=1)
    ap.add_argument("--pa", type=int, default=-1)
    ap.add_argument("--p0", type=int, default=1)
    ap.add_argument("--b2", type=int, default=0)
    ap.add_argument("--b3", type=int, default=4)
    ap.add_argument("--obar", type=int, default=2)
    ap.add_argument("--k01", type=int, default=1)
    ap.add_argument("--pb", type=int, default=0)
    ap.add_argument("--b0x", type=int, default=3)
    ap.add_argument("--mini", type=int, default=2)
    ap.add_argument("--bm", type=int, default=0)
    ap.add_argument("--qs", type=int, default=5)
    ap.add_argument("--qb", type=int, default=5)
    ap.add_argument("--spread", type=int, default=1)
    ap.add_argument("--p63", type=int, default=3)
    ap.add_argument("--hprio", default="3,2,2,1,1,0,3,2,2")
    ap.add_argument("--priv", type=int, default=0)
    ap.add_argument("--ordb", type=int, default=0)
    ap.add_argument("--split", type=int, default=0)
    ap.add_argument("--nobar63", type=int, default=0)
    ap.add_argument("--pair", type=int, default=1)
    ap.add_argument("--fake", type=int, default=0)
    ap.add_argument("--cnt", type=int, default=1)
    ap.add_argument("--pub", type=int, default=5)
    ap.add_argument("--puba", type=int, default=2)
    ap.add_argument("--pubap", type=int, default=0)
    ap.add_argument("--chka", type=int, default=3)
    ap.add_argument("--probe", default="")
    ap.add_argument("--pf", type=int, default=0)
    ap.add_argument("--qflags", default="")
    ap.add_argument("--kflags", default="")
    ap.add_argument("--osa", action="store_true")
    ap.add_argument("--pad", type=int, default=0)
    ap.add_argument("--shadow", type=int, default=1)
    ap.add_argument("--dma_start", type=int, default=0)
    ap.add_argument("--dma_pos", default="0,3")
    ap.add_argument("--bars", default="2,9")
    ap.add_argument("--loopbar", type=int, default=27)
    ap.add_argument("--prio", default="3,2,2,1,1,0")
    ap.add_argument("--align", type=int, default=0)
    ap.add_argument("--stflags", default="sc1")
    c = ap.parse_args()
    c.dma_pos = [int(x) for x in c.dma_pos.split(",")]
    c.hprio = [int(x) for x in c.hprio.split(",")] if c.hprio else []
    c.qflags = "".join(" " + x for x in c.qflags.split(",") if x); c.kflags = "".join(" " + x for x in c.kflags.split(",") if x)
    c.bars = [int(x) for x in c.bars.split(",")] if c.bars else []
    c.prio = [int(x) for x in c.prio.split(",")] if c.prio else []
    if c.stamps == "std": c.stamps = "start,setup,b0,s1,s8,loop,s63,fin,end"
    c.stamps = c.stamps.split(",") if c.stamps else []
    g = Gen(c)
    txt = g.build()
    code = lambda L: [x for x in L if is_code(x)]
    errs = check(code(g.L), "linear")
    errs += check(code(g.L[g.loop_start:g.loop_end] + g.L[g.loop_start:g.loop_end]), "loop")
    for x in errs: print("HAZARD", x)
    open(c.o, "w").write(txt)
    print("wrote", c.o, "instrs", len(code(g.L)), "vgprs", V_END, "acc_off", ACC_OFF, "agprs", A_END, "kb", [g.kb[s] for s in range(-1, 10)], "vb", [g.vb[s] for s in range(1, 10)], "tail kb", [g.kb[s] for s in range(55, 63)], "vb", [g.vb[s] for s in range(55, 65)])
main()
```

```python
import sys, math, struct, re, argparse

NAME = "standalone__fused_io_aware_attn__prompt"
def f32bits(x): return struct.unpack("<I", struct.pack("<f", x))[0]
AG = 1000
def vr(b, n=1):
    f = "v"
    if b >= AG: f, b = "a", b - AG
    return f"{f}[{b}:{b+n-1}]" if n > 1 else f"{f}{b}"
def sr(b, n=1): return f"s[{b}:{b+n-1}]" if n > 1 else f"s{b}"

V_T = 1
V_OK = 8
OSA = "--osa" in sys.argv
V_OS = AG + 48 if OSA else V_OK + 32
V_S = V_OK + (32 if OSA else 64)
V_R = V_S + 32
V_IDX = V_S + 96
V_AK = V_IDX + 1
V_AV = V_AK + 1
V_M01 = V_AV + 1
V_ROW = V_M01 + 1
V_DMA = V_ROW + 1
V_L4 = V_DMA + 1
V_XW = V_L4 + 1
V_QA = V_XW + 1
V_XR = V_QA + 5
V_XT = V_XR + 1
V_XL = V_XT + 1
V_X4 = V_XL + 1
V_GT = V_X4 + 1
V_QL1 = (V_GT + 2)//2*2
V_END = V_QL1 + 5
assert V_QA % 2 == 0
ACC_OFF = (V_END + 3)//4*4
V_Q = AG
V_QT = V_Q + 16
KB = [(V_QT + 4, V_QT + 8), (V_QT + 10, V_QT + 14)]
VB = [(V_QT + 16, V_QT + 20), (V_QT + 24, V_QT + 28)]
A_END = V_QT + 32 - AG + (32 if OSA else 0)
assert V_QT + 32 - AG == 48
def oacc(pair, i): return (V_OS if i else V_OK) + 16*pair

S_Q, S_K, S_V, S_O, S_D = 12, 16, 20, 24, 28
S_W, S_HB, S_G, S_OUT, S_REL, S_DOFF, S_LO, S_MSK, S_CNT, S_INC, S_T0, S_T1, S_T2, S_T3 = range(32, 46)
S_OK = 46
S_STAMP = 48
S_C2 = 72
S_HI = 74
S_MB = 75
S_B = 76
S_BO = 80
S_QG = 82
S_KP = 83
S_MV = 81
TOTAL_BYTES = 2*32*2048*20*2
HEAD_BYTES = 2048*40
HALF_BYTES = 1024*40
L_V = [4096, 122880]
L_K = [43008, 81920]
L_Q = 143360
L_FLAG = 3720
assert L_FLAG % 32 == 8
L_CNT = [L_FLAG + 128 + 16*k for k in range(4)]
LDS_BYTES = 163840

def regs_of(tok):
    m = re.fullmatch(r"([va])\[(\d+):(\d+)\]", tok)
    if m: return set(range((AG if m.group(1) == "a" else 0) + int(m.group(2)), (AG if m.group(1) == "a" else 0) + int(m.group(3)) + 1))
    m = re.fullmatch(r"([va])(\d+)", tok)
    if m: return {(AG if m.group(1) == "a" else 0) + int(m.group(2))}
    return set()
def parse(ins):
    p = ins.split(None, 1)
    op = p[0]; ops = [x.strip() for x in p[1].split(",")] if len(p) > 1 else []
    if ops: ops[-1] = ops[-1].split()[0] if ops[-1] else ops[-1]
    return op, ops
def is_code(x): return not (x.endswith(":") or x.startswith((".", ";")))

def flat(xs):
    out = []
    for x in xs:
        if isinstance(x, list): out += flat(x)
        elif x is not None: out.append(x)
    return out

class Gen:
    def __init__(self, cfg):
        self.cfg = cfg
        self.L = []
        self.vm = []
        self.retries = []
        self.lq = []
    def e(self, *xs):
        for x in flat(list(xs)):
            if callable(x): x = x()
            if isinstance(x, tuple):
                self.vm.append(x[2]); x = x[1]
            if is_code(x):
                op, ops = parse(x)
                if op == "s_waitcnt" and "lgkmcnt" in x:
                    n = int(re.search(r"lgkmcnt\((\d+)\)", x).group(1))
                    if n < len(self.lq): self.lq = self.lq[len(self.lq)-n:] if n else []
                elif op.startswith(("v_", "ds_", "buffer_")):
                    touched = set().union(*[regs_of(t) for t in ops]) if ops else set()
                    last = max((i for i, d in enumerate(self.lq) if d & touched), default=-1)
                    if last >= 0:
                        n = len(self.lq) - 1 - last
                        self.L.append(f"s_waitcnt lgkmcnt({n})")
                        self.lq = self.lq[last+1:]
                    if op.startswith("ds_read"): self.lq.append(regs_of(ops[0]))
                    elif op.startswith(("ds_write", "ds_add")): self.lq.append(set())
                    assert len(self.lq) <= 15, "lgkmcnt overflow"
            self.L.append(x)
    def VM(self, ins, tag): return ("VM", ins, tag)
    def vmwait(self, tag):
        def f():
            i = max(k for k, t in enumerate(self.vm) if t == tag)
            return f"s_waitcnt vmcnt({len(self.vm) - 1 - i})"
        return f
    def stamp(self, name):
        c = self.cfg
        if c.stamps and name in c.stamps:
            self.L.append(f"s_memtime {sr(S_STAMP + 2*c.stamps.index(name), 2)}")
        if c.stamps and name + "r" in c.stamps:
            self.L.append(f"s_memrealtime {sr(S_STAMP + 2*c.stamps.index(name + 'r'), 2)}")

    def dma_round(self, n):
        out = []
        if n >= 2 and n % 2 == 0 and not (self.cfg.mini == 1 and n == 2):
            out += [f"s_add_u32 m0, m0, 4096", f"s_add_u32 s{S_DOFF}, s{S_DOFF}, 4096"]
        off = (n & 1) * 2048
        out.append(self.VM(f"buffer_load_dwordx4 v{V_DMA}, {sr(S_D,4)}, s{S_DOFF} offen" + (f" offset:{off}" if off else "") + " lds", f"r{n}"))
        return out

    def qconv(self, regs):
        one = lambda r, t: [f"v_lshlrev_b32 v{t}, 16, v{r}", f"v_and_b32 v{t+1}, s{S_MSK}, v{r}",
                            f"v_pk_mul_f32 {vr(t,2)}, {vr(t,2)}, {sr(S_C2,2)}", f"v_cvt_pk_bf16_f32 v{r}, v{t}, v{t+1}"]
        out = []
        for i in range(0, len(regs) - 1, 2):
            for x, y in zip(one(regs[i], 2), one(regs[i+1], 4)): out += [x, y]
        if len(regs) & 1: out += one(regs[-1], 2)
        return out
    def stage_q(self, regs, p, ta, tb):
        W16, W4 = V_QA + 3, V_QA + 4
        return [self.vmwait(ta), self.qconv(list(range(regs, regs+4))), f"ds_write_b128 v{W16}, {vr(regs,4)} offset:{2560*p}",
                self.vmwait(tb), self.qconv([regs+4]), f"ds_write_b32 v{W4}, v{regs+4} offset:{2560*p+1024}", "s_waitcnt lgkmcnt(0)"]
    def rd4(self, dst, a, off):
        return [f"ds_read_b64 {vr(dst,2)}, v{a} offset:{off}", f"ds_read_b64 {vr(dst+2,2)}, v{a} offset:{off+8}"]
    def q_tail(self, p): return f"ds_read_b64 {vr(V_QT+2*p,2)}, v{V_QA+2} offset:{2560*p+32}"
    def q_main(self, p): return self.rd4(V_Q+8*p, V_QA, 2560*p) + self.rd4(V_Q+8*p+4, V_QA+1, 2560*p)
    def k_tail(self, b, off): return [f"ds_read_b64 {vr(KB[b][1],2)}, v{V_AK} offset:{off+32}"]
    def k_main(self, b, off): return self.rd4(KB[b][0], V_AK, off)
    def v_half(self, b, h, off):
        assert 0 <= off <= 2560
        r = VB[b][h]
        return [f"ds_read_b64_tr_b16 {vr(r,2)}, v{V_AV} offset:{off+640*h}", f"ds_read_b64_tr_b16 {vr(r+2,2)}, v{V_AV} offset:{off+640*h+160}"]

    def m2b(self, sbuf, kt, pair, c=None):
        if c is None: c = self.cfg.bias
        return f"v_mfma_f32_32x32x4_2b_bf16 {vr(sbuf,32)}, {vr(kt,2)}, {vr(V_QT+2*pair,2)}, {c} cbsz:1 abid:0"
    def m0(self, d, km, pair, i):
        return f"v_mfma_f32_32x32x16_bf16 {vr(d,16)}, {vr(km,4)}, {vr(V_Q+8*pair+4*i,4)}, {vr(d,16)}"
    def smf(self, pair, i, vreg, b):
        return f"v_smfmac_f32_32x32x32_bf16 {vr(oacc(pair,i),16)}, {vr(vreg,4)}, {vr(b,8)}, v{V_IDX}"

    def plan(self):
        c = self.cfg
        ds, de = c.ds, c.de
        items = [(0, t) for t in range(ds)] + [(1, t) for t in range(ds)]
        for t in range(ds, 32 - de): items += [(0, t), (1, t)]
        items += [(0, t) for t in range(32 - de, 32)] + [(1, t) for t in range(32 - de, 32)]
        assert len(items) == 64
        self.items = items
        self.niter = {1: 9, 3: 8}[de]
        self.l0 = 9; self.l1 = 9 + 6*self.niter
        assert 2*ds <= 8
        kt = {s: items[s+1][1] for s in range(-1, 63)}
        vt = {s: items[s-1][1] for s in range(1, 65)}
        kb, vb = {}, {}
        for s in range(self.l0 - 1, self.l1): kb[s] = 0; vb[s] = 0
        def reg(tt, s): return tt[s] == tt.get(s+1) or tt[s] == tt.get(s-1)
        for s in range(self.l0 - 2, -2, -1):
            kb[s] = kb[s+1] if (kt[s] == kt[s+1] or (kt.get(s-1) == kt[s])) else 1 - kb[s+1]
        for s in range(self.l0 - 2, 0, -1):
            vb[s] = vb[s+1] if (vt[s] == vt[s+1] or (vt.get(s-1) == vt[s])) else 1 - vb[s+1]
        for s in range(self.l1, 63):
            kb[s] = kb[s-1] if (kt[s] == kt[s-1] or kt.get(s-2) == kt[s-1]) else 1 - kb[s-1]
        for s in range(self.l1, 65):
            vb[s] = vb[s-1] if (vt[s] == vt[s-1] or vt.get(s-2) == vt[s-1]) else 1 - vb[s-1]
        self.kt, self.vt, self.kb, self.vb = kt, vt, kb, vb
        self.kl, self.vl = {}, {}
        kc, vc = {kb[-1]: kt[-1]}, {}
        for s in range(-1, 64):
            if s+1 in kt and kc.get(kb[s+1]) != kt[s+1]: self.kl[s] = kt[s+1]; kc[kb[s+1]] = kt[s+1]
            if s+1 in vt and vc.get(vb[s+1]) != vt[s+1]: self.vl[s] = vt[s+1]; vc[vb[s+1]] = vt[s+1]
    def loads_in(self, s):
        return self.kl.get(s), self.vl.get(s)
    def need_round(self, s0, s1):
        need = 0
        for s in range(s0, s1):
            k, v = self.loads_in(s)
            need = max([need] + [1280*(t+1) for t in (k, v) if t is not None])
        return (need + 2047)//2048 - 1

    def need_tag(self, s0, s1):
        if not self.cfg.mini: return f"r{self.need_round(s0, s1)}"
        tmax = max([0] + [t for s in range(s0, s1) for t in self.loads_in(s) if t is not None])
        if self.cfg.mini == 2: return "mA" if tmax <= 1 else f"r{self.need_round(s0, s1)}"
        if tmax <= 2: return "mB"
        if tmax == 3: return "mC"
        return f"r{self.need_round(s0, s1)}"

    def slot(self, j, kbase, vbase, X=None, late=False, skip_loads=False):
        X = X or {}
        x = lambda k: X.get(k, [])
        c = self.cfg
        sc = V_S + 32*(j % 3); sn = V_S + 32*((j+1) % 3); sp = V_S + 32*((j-1) % 3)
        ex = [f"v_exp_f32 v{sc+i}, v{sc+i}" for i in range(32)]
        M2 = MA = MB = S1 = S2 = S3 = S4 = None
        if j < 63:
            pn = self.items[j+1][0]; km, ktl = KB[self.kb[j]]
            M2, MA, MB = self.m2b(sn, ktl, pn), self.m0(sn, km, pn, 0), self.m0(sn+16, km, pn, 1)
        if j > 0:
            pp = self.items[j-1][0]; va, vb = VB[self.vb[j]]
            S1, S2, S3, S4 = self.smf(pp, 0, va, sp), self.smf(pp, 1, va, sp+16), self.smf(pp, 0, vb, sp+8), self.smf(pp, 1, vb, sp+24)
        k, v = self.loads_in(j)
        if skip_loads: k = v = None
        KT = KM = VA = VBh = []
        kjit = vjit = True
        if k is not None:
            b = self.kb[j+1]; KT = self.k_tail(b, (k-kbase)*1280); KM = self.k_main(b, (k-kbase)*1280); kjit = (b == self.kb[j])
        if v is not None:
            b = self.vb[j+1]; VA = self.v_half(b, 0, (v-vbase)*1280); VBh = self.v_half(b, 1, (v-vbase)*1280); vjit = (j > 0 and b == self.vb[j])
        a1 = [] if kjit else KM
        a2 = VA
        a3 = [] if vjit else VBh
        a4 = KM if kjit else []
        a5 = VBh if vjit else []
        if not (self.l0 <= j < self.l1): self.e(f"; ---- slot {j}: exp of (pair {self.items[j][0]}, key tile {self.items[j][1]}); scores of the next item; P.V of the previous one")
        else: self.e(f"; ---- loop slot {j - self.l0}")
        if c.prio and not (c.dedup and self.l0 <= j < self.l1 and c.prio[j % len(c.prio)] == (c.prio2 or c.prio)[(j-1) % len(c.prio)]):
            self.e(f"s_setprio {c.hprio[j] if (j < len(c.hprio)) else c.prio[j % len(c.prio)]}")
        if c.prio2 and self.l0 <= j < self.l1:
            X = dict(X); X[c.p2pos] = [f"s_setprio {c.prio2[j % len(c.prio2)]}"] + X.get(c.p2pos, [])
        if late:
            self.e(x(0), ex[0:2], x(8), ex[2:4], x(6), ex[4:6], M2, KT, x(7), ex[6:10], x(1), S1, a1, x(2), ex[10:14], S2, a2, ex[14:18], S3, x(3), ex[18:22],
                   MA, a3, ex[22:25], MB, a4, x(4), ex[25:28], S4, a5, ex[28:32], x(5))
        elif c.mfirst and j >= c.mfirst and j < 63:
            d0, d1 = sn, sn + 16
            MA = f"v_mfma_f32_32x32x16_bf16 {vr(d0,16)}, {vr(km,4)}, {vr(V_Q+8*pn,4)}, {c.bias}"
            MB = f"v_mfma_f32_32x32x16_bf16 {vr(d1,16)}, {vr(km,4)}, {vr(V_Q+8*pn+4,4)}, {c.bias}"
            M2 = self.m2b(sn, ktl, pn, c=vr(sn, 32))
            if c.mpat == 0:
                self.e(x(0), MA, ex[0:4], MB, KM, x(1), ex[4:8], S1, x(2), ex[8:13], M2, KT, ex[13:20], S2, a2, x(3), ex[20:24], S3, a3, x(4), ex[24:28], S4, a5, ex[28:32], x(5))
            elif c.mpat == 1:
                self.e(x(0), MA, ex[0:4], MB, KM, x(1), ex[4:9], S1, x(2), ex[9:13], M2, KT, ex[13:21], S2, a2, x(3), ex[21:25], S3, a3, x(4), ex[25:29], S4, a5, ex[29:32], x(5))
            else:
                self.e(x(0), MA, ex[0:3], MB, KM, x(1), ex[3:8], S1, x(2), ex[8:12], M2, KT, ex[12:20], S2, a2, x(3), ex[20:24], S3, a3, x(4), ex[24:28], S4, a5, ex[28:32], x(5))
        elif c.ordb and j >= self.l0 - 1 and vjit and kjit:
            self.e(x(0), M2, KT, ex[0:4], x(1), ex[4:8], S1, x(2), ex[8:12], S3, ex[12:16],
                   MA, x(3), ex[16:20], MB, a4, ex[20:24], S2, a2, x(4), ex[24:28], S4, a5, ex[28:32], x(5))
        else:
            self.e(x(0), M2, KT, ex[0:4], x(1), ex[4:8], S1, a1, x(2), ex[8:12], S2, a2, ex[12:16], "s_nop 1" if j == 0 else None,
                   MA, a3, x(3), ex[16:20], MB, a4, ex[20:24], S3, x(4), ex[24:28], S4, a5, ex[28:32], x(5))

    def prologue(self):
        c = self.cfg
        e = self.e
        assert c.pair and c.k01 and c.mini == 2 and c.ds == (1 if c.one else 2) and not c.priv
        scale = math.log2(math.e) / math.sqrt(20.0)
        QL = V_S + 64
        QL1 = self.QL1 = V_QL1
        A0, A1, A2, W16, W4 = range(V_QA, V_QA + 5)
        S_KR, S_VR, S_P = S_KP, S_QG, S_HI
        e("s_cmp_ge_u32 s2, 256", "s_cbranch_scc1 L_end",
          f"s_load_dwordx2 {sr(S_Q,2)}, s[0:1], 0", f"s_load_dwordx2 {sr(S_K,2)}, s[0:1], 8", f"s_load_dwordx2 {sr(S_V,2)}, s[0:1], 16")
        self.stamp("zero")
        if c.pf:
            e(f"s_getpc_b64 {sr(S_O,2)}", "L_pc:", f"s_mov_b32 s{S_O+2}, L_slow-L_pc", f"s_mov_b32 s{S_O+3}, 0x20000",
              f"s_lshl_b32 s3, s2, 5", f"s_and_b32 s3, s3, 0x1f00",
              f"v_and_b32 v1, 63, v0", f"v_lshlrev_b32 v1, 2, v1",
              self.VM(f"buffer_load_dword v{V_S+32}, v1, {sr(S_O,4)}, s3 offen", "pf"))
        self.stamp("start")
        if c.stamps: e("s_memrealtime s[70:71]")
        e(f"v_lshrrev_b32 v1, 6, v0",
          f"v_and_b32 v2, 63, v0",
          f"v_readfirstlane_b32 s{S_W}, v1",
          f"s_and_b32 s{S_T0}, s2, 7",
          f"s_lshl_b32 s{S_T0}, s{S_T0}, 3",
          f"s_lshr_b32 s{S_T1}, s2, 5",
          f"s_add_u32 s{S_T0}, s{S_T0}, s{S_T1}",
          f"s_mul_i32 s{S_HB}, s{S_T0}, {HEAD_BYTES}",
          f"s_bfe_u32 s{S_OUT}, s2, 0x20003",
          f"s_mulk_i32 s{S_OUT}, 20480",
          f"s_add_u32 s{S_OUT}, s{S_OUT}, s{S_HB}",
          f"v_lshlrev_b32 v{V_DMA}, 4, v2",
          f"v_lshlrev_b32 v{V_L4}, 2, v2",
          f"s_lshr_b32 s{S_P}, s{S_W}, 1",
          f"s_and_b32 s{S_T2}, s{S_W}, 1",
          f"s_mulk_i32 s{S_P}, 640",
          f"s_lshl_b32 s{S_G}, s{S_P}, 3",
          f"s_mul_i32 s{S_REL}, s{S_T2}, 1280",
          f"s_add_u32 s{S_REL}, s{S_REL}, s{S_G}",
          f"s_add_u32 s{S_OUT}, s{S_OUT}, s{S_REL}",
          f"s_mul_i32 s{S_DOFF}, s{S_T2}, {HALF_BYTES}",
          f"s_add_u32 s{S_DOFF}, s{S_DOFF}, s{S_HB}",
          f"s_add_u32 s{S_LO}, s{S_DOFF}, s{S_P}",
          f"s_mul_i32 s{S_KR}, s{S_T2}, {L_K[1]-L_K[0]}",
          f"s_add_u32 s{S_KR}, s{S_KR}, {L_K[0]}",
          f"s_add_u32 m0, s{S_KR}, s{S_P}",
          f"s_mov_b32 s{S_Q+2}, {TOTAL_BYTES}",
          f"s_mov_b32 s{S_Q+3}, 0x20000",
          f"s_mov_b64 {sr(S_K+2,2)}, {sr(S_Q+2,2)}",
          f"s_mov_b64 {sr(S_V+2,2)}, {sr(S_Q+2,2)}",
          f"s_mul_i32 s{S_VR}, s{S_T2}, {L_V[1]-L_V[0]}",
          f"s_addk_i32 s{S_VR}, {L_V[0]}",
          lambda: (self.stamp("pre"), "s_waitcnt lgkmcnt(0)")[1],
          self.VM(f"buffer_load_dwordx4 {vr(QL,4)}, v{V_DMA}, {sr(S_Q,4)}, s{S_OUT} offen", "q0a"),
          self.VM(f"buffer_load_dword v{QL+4}, v{V_L4}, {sr(S_Q,4)}, s{S_OUT} offen offset:1024", "q0b"),
          "s_mov_b32 exec_hi, 0xff",
          self.VM(f"buffer_load_dwordx4 v{V_DMA}, {sr(S_K,4)}, s{S_LO} offen lds", "k01"),
          f"s_add_u32 m0, s{S_VR}, s{S_P}")
        self.stamp("iss")
        e("s_barrier",
          self.VM(f"buffer_load_dwordx4 v{V_DMA}, {sr(S_V,4)}, s{S_LO} offen lds", "mA"),
          "s_mov_b32 exec_hi, -1",
          self.VM(f"buffer_load_dwordx4 {vr(QL1,4)}, v{V_DMA}, {sr(S_Q,4)}, s{S_OUT} offen offset:2560", "q1a"),
          self.VM(f"buffer_load_dword v{QL1+4}, v{V_L4}, {sr(S_Q,4)}, s{S_OUT} offen offset:3584", "q1b"),
          f"s_load_dwordx2 {sr(S_O,2)}, s[0:1], 24")
        e(
          f"s_lshl_b32 s{S_T3}, s{S_W}, 8", f"s_and_b32 s{S_T3}, s{S_T3}, 1024",
          f"s_add_u32 s{S_DOFF}, s{S_DOFF}, s{S_T3}",
          f"s_bitcmp1_b32 s{S_W}, 1",
          f"s_cselect_b32 s{S_T0}, s{S_VR}, s{S_KR}",
          f"s_cselect_b64 {sr(S_D,2)}, {sr(S_V,2)}, {sr(S_K,2)}",
          f"s_add_u32 m0, s{S_T0}, s{S_T3}",
          f"s_mov_b64 {sr(S_D+2,2)}, {sr(S_Q+2,2)}",
          f"s_mov_b64 {sr(S_O+2,2)}, {sr(S_Q+2,2)}",
          f"s_mov_b32 s{S_C2}, 0x{f32bits(scale):08x}", f"s_mov_b32 s{S_C2+1}, s{S_C2}",
          f"s_mov_b32 s{S_MSK}, 0xffff0000",
          f"v_mov_b32 v4, 0", f"v_mov_b32 v5, 0",
          f"v_and_b32 v3, 31, v0",
          f"v_bfe_u32 v6, v0, 5, 1",
          f"v_mfma_f32_32x32x4_2b_bf16 {vr(V_OK,32)}, v[4:5], v[4:5], 0",
          f"v_mfma_f32_32x32x4_2b_bf16 {vr(V_OS,32)}, v[4:5], v[4:5], 0",
          f"v_and_b32 v1, 1, v0",
          f"v_subrev_u32 v1, 1, v1",
          f"v_and_b32 v4, 0x3f80, v1",
          f"v_lshlrev_b32 v1, 3, v0",
          f"v_mul_u32_u24 v3, 40, v3",
          f"ds_write_b64 v1, v[4:5]",
          f"v_lshl_add_u32 v{V_ROW}, v6, 4, v3",
          f"v_add_u32 v{V_AK}, s{S_KR}, v{V_ROW}",
          f"s_add_u32 s{S_T0}, s{S_REL}, {L_Q}",
          f"v_add_u32 v{W16}, s{S_T0}, v{V_DMA}",
          f"v_add_u32 v{W4}, s{S_T0}, v{V_L4}",
          f"v_add_u32 v{A0}, s{S_T0}, v{V_ROW}",
          f"s_sub_u32 s{S_T3}, s{S_REL}, s{S_G}",
          f"s_sub_u32 s{S_T0}, s{S_T0}, s{S_T3}",
          f"s_lshl_b32 s{S_T1}, s{S_T2}, 5",
          f"v_xor_b32 v{A2}, s{S_T1}, v2",
          f"v_mad_u32_u24 v{A2}, v{A2}, 40, s{S_T0}",
          f"s_sub_u32 s{S_T0}, s{S_T0}, s{S_T3}",
          f"s_addk_i32 s{S_T0}, 1280",
          f"v_add_u32 v{A1}, s{S_T0}, v{V_ROW}",
          f"v_bfe_u32 v1, v0, 2, 2",
          f"v_lshl_add_u32 v1, v6, 3, v1",
          f"v_mad_u32_u24 v1, v1, 40, s{S_VR}",
          f"v_and_b32 v2, 19, v0",
          f"v_and_b32 v5, 3, v0",
          f"v_lshl_add_u32 v1, v2, 1, v1",
          f"v_mad_u32_u24 v1, v5, 6, v1",
          f"v_lshlrev_b32 v6, 6, v6",
          f"v_and_b32 v5, 2, v0",
          f"v_lshl_add_u32 v6, v5, 2, v6",
          f"v_cmp_lt_u32 vcc, 16, v2",
          f"v_add_u32 v6, 160, v6",
          f"s_movk_i32 s{S_INC}, 3840",
          f"v_cndmask_b32 v{V_AV}, v1, v6, vcc",
          f"v_cndmask_b32 v{V_M01}, 1, 0, vcc")
        late = [f"s_lshr_b32 s{S_T0}, s{S_W}, 1", f"s_mul_i32 s{S_T0}, s{S_T0}, 38912", f"s_mul_i32 s{S_T3}, s{S_T2}, 6144",
          f"s_sub_u32 s{S_T1}, s{S_T0}, s{S_T3}", f"s_add_u32 s{S_T0}, s{S_T0}, s{S_T3}",
          f"s_addk_i32 s{S_T0}, 6144", f"s_addk_i32 s{S_T1}, 12288",
          f"v_add_u32 v{V_XW}, s{S_T0}, v{V_DMA}",
          f"v_add_u32 v{V_XR}, s{S_T1}, v{V_DMA}",
          f"v_mad_u32_u24 v{V_XL}, v{V_L4}, 10, s{S_T1}",
          f"v_lshrrev_b32 v1, 4, v{V_L4}",
          f"v_and_b32 v1, 8, v1",
          f"v_sub_u32 v1, v{V_ROW}, v1",
          f"v_add_u32 v{V_XT}, s{S_T1}, v1",
          f"v_and_b32 v1, 0x100, v{V_DMA}",
          f"v_mad_u32_u24 v{V_GT}, v1, 9, v{V_DMA}",
          f"v_mad_u32_u24 v{V_X4}, v1, 11, v{V_XR}",
          f"v_mov_b32 v{V_IDX}, 0xdddd",
          f"s_mov_b64 {sr(S_OK,2)}, -1"]
        if c.ohack: e("s_nop 15", "s_nop 7", f"s_mov_b32 s3, 0x{f32bits(c.ohack):08x}", [f"v_mov_b32 {vr(V_OK+k)}, s3" for k in range(64) if k % 16 < c.ohn])
        if not c.shadow: e(late)
        e(["s_nop 0"] * c.pad)
        self.stamp("setup")
        e(self.stage_q(QL, 0, "q0a", "q0b")[:-1 if c.one else None])
        if c.one: e(self.stage_q(QL1, 1, "q1a", "q1b"))
        self.stamp("staged")
        e(self.vmwait("k01"), "s_barrier")
        self.stamp("b0")
        s0 = V_S
        k1 = self.k_tail(self.kb[0], 1280*self.kt[0]) + self.k_main(self.kb[0], 1280*self.kt[0])
        if c.one: k1 = [self.q_tail(1)] + self.q_main(1)
        e(self.q_tail(0), self.k_tail(self.kb[-1], 0), self.k_main(self.kb[-1], 0), self.q_main(0)[:2])
        M2, MA, MB = self.m2b(s0, KB[self.kb[-1]][1], 0), self.m0(s0, KB[self.kb[-1]][0], 0, 0), self.m0(s0+16, KB[self.kb[-1]][0], 0, 1)
        e(M2, self.q_main(0)[2:], k1, [self.dma_round(n) for n in range(1, c.p0 + 1)])
        if c.shadow: e(late[:11], MA, MB, late[11:])
        else: e("s_nop 10", MA, MB, "s_nop 7")
        self.stamp("qk0")

    def vadv(self, ntiles):
        if ntiles == 3: return [f"v_mad_u32_u24 v{V_AV}, v{V_M01}, s{S_INC}, v{V_AV}"]
        return [f"s_movk_i32 s{S_T0}, {1280*ntiles}", f"v_mad_u32_u24 v{V_AV}, v{V_M01}, s{S_T0}, v{V_AV}"]

    def fin_groups(self, p, add=True, check=True):
        KO = V_OK + 16*p; R = V_R + 16*p; L = V_T + 2*p; T = V_T + 5; CK = V_T + 6; RC = V_QA + 2*p
        z = 3072*p
        g = {}
        g["rd"] = [f"ds_read_b128 {vr(R+4*k,4)}, v{V_XR} offset:{z+1024*k}" for k in (2, 0, 1)]
        g["add"] = [f"v_pk_add_f32 {vr(KO+k,2)}, {vr(KO+k,2)}, {vr(R+k,2)}" for k in (8, 10, 0, 2, 4, 6)]
        g["l1"] = [f"v_mov_b32 v{L}, v{KO+8}"]
        g["l2"] = [f"v_permlane32_swap_b32 v{KO+8}, v{L}"]
        g["l3"] = [f"v_rcp_f32 v{RC}, v{L}"]
        g["c1"] = [f"v_add_u32 v{T}, s{S_LO}, v{L}", f"v_mov_b32 v{CK}, 0", f"v_cmp_gt_u32 vcc, s{S_HI}, v{T}"] if check else ["s_nop 0"]
        g["mul"] = [f"v_pk_mul_f32 {vr(KO+k,2)}, {vr(KO+k,2)}, {vr(RC,2)} op_sel_hi:[1,0]" for k in range(0, 12, 2)]
        g["c2"] = [f"s_and_b64 {sr(S_OK,2)}, {sr(S_OK,2)}, vcc"] if check else []
        g["cvt"] = [f"v_cvt_pk_bf16_f32 v{KO+k}, v{KO+2*k}, v{KO+2*k+1}" for k in range(6)]
        g["wr"] = [f"ds_write_b64 v{V_XT}, {vr(KO,2)} offset:{z}", f"ds_write_b64 v{V_XT}, {vr(KO+2,2)} offset:{z+16}", f"ds_write_b64 v{V_XL}, {vr(KO+4,2)} offset:{z+32}"]
        g["dot"] = [f"v_dot2_f32_bf16 v{CK}, v{KO+k}, 0, v{CK}" for k in range(6)] if check else []
        g["rb"] = ["s_waitcnt lgkmcnt(0)", f"ds_read_b128 {vr(R,4)}, v{V_XR} offset:{z}", f"ds_read_b32 v{R+4}, v{V_X4} offset:{z+1024}"]
        g["c3"] = [f"v_cmp_o_f32 vcc, v{CK}, v{CK}"] if check else []
        g["c4"] = [f"s_and_b64 {sr(S_OK,2)}, {sr(S_OK,2)}, vcc"] if check else []
        fl = (" " + self.cfg.stflags) if self.cfg.stflags else ""
        g["st"] = [f"buffer_store_dwordx4 {vr(R,4)}, v{V_DMA}, {sr(S_O,4)}, s{S_OUT} offen offset:{2560*p}{fl}",
                   f"buffer_store_dword v{R+4}, v{V_L4}, {sr(S_O,4)}, s{S_OUT} offen offset:{2560*p+1024}{fl}"]
        return g
    def finish_both(self, A, B, add=True):
        fl = (" " + self.cfg.stflags) if self.cfg.stflags else ""
        RA, RB, RT = V_R, V_R + 16, V_R + 4
        return [A["add"] if add else [], A["l1"], "s_nop 1", A["l2"], A["l3"], B["add"][:1] if add else "s_nop 0", A["mul"], A["cvt"], A["wr"],
                B["add"][1:] if add else [], B["l1"], "s_waitcnt lgkmcnt(0)", f"ds_read_b128 {vr(RA,4)}, v{V_XR}", B["l2"], B["l3"], "s_nop 0", B["mul"], B["cvt"], B["wr"],
                f"buffer_store_dwordx4 {vr(RA,4)}, v{V_DMA}, {sr(S_O,4)}, s{S_OUT} offen{fl}",
                "s_waitcnt lgkmcnt(0)", f"ds_read_b128 {vr(RB,4)}, v{V_XR} offset:3072", f"ds_read_b128 {vr(RT,4)}, v{V_X4} offset:1024",
                f"buffer_store_dwordx4 {vr(RB,4)}, v{V_DMA}, {sr(S_O,4)}, s{S_OUT} offen offset:2560{fl}",
                "s_mov_b32 exec_hi, 0", f"buffer_store_dwordx4 {vr(RT,4)}, v{V_GT}, {sr(S_O,4)}, s{S_OUT} offen offset:1024{fl}", "s_mov_b32 exec_hi, -1"]
    def publish(self, k):
        return ["s_mov_b64 exec, 1", f"ds_add_u32 v{V_L4}, v{V_M01} offset:{L_CNT[k]}", "s_mov_b64 exec, -1"]
    def poll_read(self, k): return f"ds_read_b32 v7, v{V_L4} offset:{L_CNT[k]}"
    def poll_test(self, k):
        self.retries.append(k)
        return [f"L_chk{k}:", f"v_readfirstlane_b32 s{S_T0}, v7", "s_nop 0", f"s_cmp_eq_u32 s{S_T0}, 8", f"s_cbranch_scc0 L_retry{k}"]
    def send(self, p):
        return [f"ds_write_b128 v{V_XW}, {vr(V_OS+16*p+4*k,4)} offset:{3072*p+1024*k}" for k in range(3)]

    def main(self):
        c = self.cfg
        e = self.e
        NP = self.l0
        qslot = c.ds - 2
        bars = self.bars
        allb = bars + ([c.loopbar] if c.loopbar else []) + [64]
        rounds = list(range(c.p0 + 1, 20))
        ext = {j: {} for j in range(NP)}
        lastk = max([-1] + [s for s in range(0, NP) if self.loads_in(s)[0] in (0, 1)])
        safeq = min(b for b in bars if b >= qslot + 2)
        safe = min(b for b in bars if b >= lastk + 2 and b >= safeq)
        if c.cnt == 2:
            assert bars == [1, c.chka + 1, NP] and c.chka % 2 == 1 and c.puba >= 2 and lastk < 1
            bars = [1, NP]
        j, k = c.dma_start, 0
        while rounds:
            n = rounds[0]
            lim = safe if n == 19 else (safeq if n >= 10 else 0)
            if j < lim:
                j += 1; k = 0; continue
            assert j < NP, "DMA rounds do not fit in the peeled slots"
            rounds.pop(0)
            ext[j].setdefault(c.dma_pos[k], []).extend(self.dma_round(n))
            k += 1
            if k == len(c.dma_pos): j += 1; k = 0
        vbase = 0
        def bar(b, after=None):
            nxt = min(x for x in allb if x > (b if after is None else after))
            return [self.vmwait(self.need_tag(b, nxt)), "s_barrier"]
        for j in range(NP):
            x = ext[j]
            if j in bars and j != qslot + 1: x[0] = bar(j)[:1 if c.fake & 4 else 2] + x.get(0, [])
            if j == qslot:
                def mark(n):
                    def f():
                        self.stamp(n); return "s_nop 0"
                    return [f] if n in c.stamps else []
                if c.qs >= 0: x[c.qs] = x.get(c.qs, []) + mark("pq") + self.stage_q(self.QL1, 1, "q1a", "q1b")[:-1] + mark("aq")
                x[c.qb] = x.get(c.qb, []) + ["s_waitcnt lgkmcnt(0)"] + (bar(j+1) if c.qb == 5 else bar(j, j+1)) + [self.q_tail(1)]
                self.pending = self.q_main(1)
                if c.qb < 5 or not c.spread:
                    x[min(5, c.qb + c.spread)] = x.get(min(5, c.qb + c.spread), []) + self.pending; self.pending = []
            if j == qslot + 1 and not c.one and self.pending:
                x[6] = self.pending[:2]; x[7] = self.pending[2:]
            nextv = next((self.loads_in(s)[1] for s in range(j+1, 64) if self.loads_in(s)[1] is not None))
            adv = None
            if j == NP - 1: adv = nextv - vbase
            elif nextv - vbase > 2: adv = 3
            if adv: x[5] = x.get(5, []) + self.vadv(adv)
            if c.cnt and j == c.pub:
                x[5] = x.get(5, []) + [self.vmwait(self.need_tag(NP, c.loopbar))] + self.publish(0)
            if c.cnt == 2 and j == c.puba:
                x[c.pubap] = [self.vmwait(self.need_tag(c.chka + 1, NP))] + self.publish(3) + x.get(c.pubap, [])
            if c.cnt == 2 and j == c.chka:
                x[0] = x.get(0, []) + [self.poll_read(3)]
                x[4] = x.get(4, []) + self.poll_test(3)
            if c.cnt and j == NP - 1:
                x[0] = [self.poll_read(0)] + x.get(0, [])
                x[4] = x.get(4, []) + self.poll_test(0)
            skip = False
            if j == 0 and c.k01 and not c.one:
                k0, v0 = self.loads_in(0)
                ld = (self.k_tail(self.kb[1], 1280*k0) + self.k_main(self.kb[1], 1280*k0) if k0 is not None else []) + self.v_half(self.vb[1], 0, 1280*v0) + self.v_half(self.vb[1], 1, 1280*v0)
                if qslot == 0 and c.spread and c.qb < 5:
                    x[c.qb] = x[c.qb] + ld[:2]; x[5] = x.get(5, []) + ld[2:]
                elif qslot == 0 and c.spread:
                    x[5] = x[5] + ld[:2]; ext[1][8] = ld[2:]
                elif qslot == 0: x[c.qb] = x[c.qb] + ld
                else: x[c.b0x] = x.get(c.b0x, []) + bar(0) + ld
                skip = True
            self.slot(j, 0, vbase, x, late=((j == qslot + 1 and c.qb == 5 and not c.one) or (j == 1 and c.k01 and qslot > 0 and c.b0x == 5)), skip_loads=skip)
            if adv: vbase += adv
            self.stamp(f"s{j}")
        if NP in bars and not c.cnt: e(bar(NP)[:1 if c.fake & 1 else 2])
        e(f"s_mov_b32 s{S_CNT}, {self.niter}", f"s_mov_b32 s{S_LO}, 0xc0800000", f"s_mov_b32 s{S_HI}, 0x32000000")
        if c.pair:
            e(f"s_lshl_b32 s{S_T0}, s{S_W}, 4", f"s_add_u32 s{S_T0}, s{S_T0}, {L_FLAG}", f"s_xor_b32 s{S_T1}, s{S_T0}, 16",
              f"v_mov_b32 v{V_QL1}, s{S_T0}", f"v_mov_b32 v{V_QL1+1}, s{S_T1}")
        lq_entry = [set(q) for q in self.lq]
        n1 = (c.loopbar - NP)//6
        parts = [("L_loop", None)] if not (c.split and c.loopbar) else [("L_loop", self.niter - n1), ("L_loop2", 0)]
        for pi, (lab, stop) in enumerate(parts):
            if pi: e("s_waitcnt vmcnt(0)", "s_barrier")
            if c.align: e(f".p2align {c.align}")
            e(lab + ":")
            self.loop_start = len(self.L)
            for jj in range(6):
                j = NP + jj
                x = {}
                if jj == 0 and c.loopbar and stop is None:
                    x[0] = [f"s_cmp_eq_u32 s{S_CNT}, {self.niter - n1}", "s_cbranch_scc1 L_bar", "L_bar_ret:"]
                    if c.cnt: x[0][0] = f"s_bitcmp1_b32 {(1 << (self.niter - n1)) | (1 << (self.niter - 1))}, s{S_CNT}"
                if jj == 5:
                    x[4] = [f"s_sub_u32 s{S_CNT}, s{S_CNT}, 1"]
                    x[5] = [f"v_add_u32 v{V_AK}, s{S_INC}, v{V_AK}", self.vadv(3), f"s_cmp_lg_u32 s{S_CNT}, {stop or 0}", f"s_cbranch_scc1 {lab}"]
                self.slot(j, 0, vbase, x)
            assert self.lq == lq_entry, (self.lq, lq_entry)
            self.loop_end = len(self.L)
        kbase = 3*self.niter; vbase += 3*self.niter
        self.stamp("loop")
        early = c.de > 1
        A = self.fin_groups(0); B = self.fin_groups(1)
        sA = 64 - c.de
        for j in range(self.l1, 63):
            x = {}
            if early and j == sA:
                x[5] = []
            if early and j == sA + 1:
                sd = self.send(0)
                pre = ["s_barrier"] if c.loopbar < 27 else []
                x[1] = ["s_nop 0"] + pre + sd
                x[3] = ["s_waitcnt lgkmcnt(0)", "s_barrier", A["rd"]]
                x[4] = [A["add"], A["l1"]]
                x[5] = [A["l2"], A["l3"], A["c1"], A["mul"], A["c2"], A["cvt"], A["wr"], A["dot"]]
            self.slot(j, kbase, vbase, x)
        sc = V_S + 32*(63 % 3); sp = V_S + 32*(62 % 3)
        ex = [f"v_exp_f32 v{sc+i}, v{sc+i}" for i in range(32)]
        if c.prio: e(f"s_setprio {c.prio[63 % len(c.prio)] if c.p63 < 0 else c.p63}")
        pp = self.items[62][0]; va, vb = VB[self.vb[63]]; wa, wb = VB[self.vb[64]]
        if not early:
            sd0, sd1 = self.send(0), self.send(1)
            e(self.smf(0, 1, va, sp+16), ex[16:19], self.smf(0, 1, vb, sp+24), self.poll_read(2) if c.cnt else None, ex[19:22], self.smf(0, 0, va, sp),
              ex[22:26], self.smf(1, 1, wa, sc+16), ex[26:29], "s_barrier" if c.loopbar < 27 else None, self.poll_test(2) if c.cnt else None,
              sd0[0], ex[29:30], self.smf(0, 0, vb, sp+8), sd0[1], ex[30:32], sd0[2], ex[0:1], self.smf(1, 1, wb, sc+24))
            flag = lambda o: ["s_waitcnt lgkmcnt(0)", "s_mov_b64 exec, 1", f"ds_write_b32 v{V_QL1}, v{V_IDX} offset:{o}", "s_mov_b64 exec, -1", f"ds_read_b32 v6, v{V_QL1+1} offset:{o}"]
            test = lambda n: [f"L_poll{n}:", f"v_readfirstlane_b32 s{S_T0}, v6", "s_nop 0", f"s_cmp_lg_u32 s{S_T0}, 0", f"s_cbranch_scc0 L_wait{n}"]
            if c.two:
                fl = (" " + c.stflags) if c.stflags else ""
                RA, RB, RT = V_R, V_R + 16, V_R + 4
                e(ex[1:3], flag(0), ex[3:7], test(0), A["rd"], ex[7:10], self.smf(1, 0, wa, sc), ex[10:12], sd1,
                  A["add"], A["l1"], ex[12:14], A["l2"], A["l3"], flag(4), ex[14:16], A["mul"][:2], self.smf(1, 0, wb, sc+8), A["mul"][2:], A["cvt"],
                  test(1), B["rd"], A["wr"])
                self.stamp("s63")
                e(B["add"], B["l1"], "s_waitcnt lgkmcnt(0)", f"ds_read_b128 {vr(RA,4)}, v{V_XR}", B["l2"], B["l3"], "s_nop 0", B["mul"], B["cvt"], B["wr"],
                  f"buffer_store_dwordx4 {vr(RA,4)}, v{V_DMA}, {sr(S_O,4)}, s{S_OUT} offen{fl}",
                  "s_waitcnt lgkmcnt(0)", f"ds_read_b128 {vr(RB,4)}, v{V_XR} offset:3072", f"ds_read_b128 {vr(RT,4)}, v{V_X4} offset:1024",
                  f"buffer_store_dwordx4 {vr(RB,4)}, v{V_DMA}, {sr(S_O,4)}, s{S_OUT} offen offset:2560{fl}",
                  "s_mov_b32 exec_hi, 0", f"buffer_store_dwordx4 {vr(RT,4)}, v{V_GT}, {sr(S_O,4)}, s{S_OUT} offen offset:1024{fl}", "s_mov_b32 exec_hi, -1")
            else:
                e(ex[1:10], self.smf(1, 0, wa, sc), ex[10:12], sd1, ex[12:14], flag(0), ex[14:16], "s_nop 1", self.smf(1, 0, wb, sc+8), test(0), A["rd"], B["rd"])
                self.stamp("s63")
                e(self.finish_both(A, B))
            self.stamp("fin")
            e(A["c1"], A["dot"], A["c2"], "s_nop 1", A["c3"], B["c1"][0], A["c4"], B["c1"][1:], B["dot"], B["c2"], "s_nop 1", B["c3"], "s_nop 1", B["c4"],
              f"s_andn2_b64 vcc, exec, {sr(S_OK,2)}", "s_cbranch_scc1 L_slow")
        else:
            k, v = self.loads_in(63)
            VA = self.v_half(self.vb[64], 0, (v-vbase)*1280); VBh = self.v_half(self.vb[64], 1, (v-vbase)*1280)
            sd1 = self.send(1)
            e(VA, VBh, self.smf(1, 1, va, sp+16), ex[16:20], self.smf(1, 1, vb, sp+24), A["c3"], ex[20:22], A["rb"], A["c4"], ex[22:26], self.smf(1, 1, wa, sc+16),
              ex[26:29], A["st"], self.smf(1, 0, va, sp), ex[29:32], ex[0:2], self.smf(1, 1, wb, sc+24), ex[2:6], self.smf(1, 0, vb, sp+8),
              ex[6:10], self.smf(1, 0, wa, sc), ex[10:12], sd1,
              "s_waitcnt lgkmcnt(0)", "s_barrier", B["rd"], ex[12:16], "s_nop 1", self.smf(1, 0, wb, sc+8), "s_nop 10")
            self.stamp("s63")
            e(B["add"], B["l1"], "s_nop 1", B["l2"], B["l3"], B["c1"], B["mul"], B["c2"], B["cvt"], B["wr"], B["dot"], B["rb"], "s_nop 0", B["c3"], "s_nop 1", B["c4"])
        assert not early
        if c.probe:
            a, b = c.stamps.index(c.probe.split(",")[0]), c.stamps.index(c.probe.split(",")[1])
            ra = f"s{S_STAMP+2*a}"
            e("s_waitcnt vmcnt(0)", "s_memrealtime s[4:5]", "s_waitcnt lgkmcnt(0)",
              f"s_sub_u32 s6, s{S_STAMP+2*b}, {ra}", "s_mul_i32 s6, s6, 10", "s_add_u32 s6, s6, s4",
              "L_spin:", "s_memrealtime s[8:9]", "s_waitcnt lgkmcnt(0)", "s_sub_u32 s7, s8, s6", "s_cmp_lt_i32 s7, 0", "s_cbranch_scc1 L_spin")
        elif c.stamps: self.dump()
        e("L_end:", "s_endpgm")
        if c.pair:
            self.lq = []
            for n in range(2 if c.two else 1):
                e(f"L_wait{n}:", f"ds_read_b32 v6, v{V_QL1+1} offset:{4*n}", "s_waitcnt lgkmcnt(0)", f"s_branch L_poll{n}")
        if c.cnt:
            self.lq = []
            e("L_bar:", f"s_cmp_eq_u32 s{S_CNT}, {self.niter - 1}", "s_cbranch_scc0 L_bar2",
              "s_waitcnt vmcnt(0)", self.publish(1), "s_branch L_bar_ret",
              "L_bar2:", self.poll_read(1), self.poll_test(1), self.publish(2), "s_branch L_bar_ret")
            for k in self.retries:
                self.lq = []
                e(f"L_retry{k}:", self.poll_read(k), "s_waitcnt lgkmcnt(0)", f"s_branch L_chk{k}")
        elif c.loopbar and not c.split: e("L_bar:", "s_waitcnt vmcnt(0)", "s_barrier" if not c.fake & 2 else None, "s_branch L_bar_ret")

    def dump(self):
        e = self.e; c = self.cfg
        e("s_waitcnt vmcnt(0)")
        self.stamp("end")
        e("s_load_dwordx2 s[4:5], s[0:1], 40", "s_waitcnt lgkmcnt(0)", "s_mov_b32 s6, 0x1000000", "s_mov_b32 s7, 0x20000",
          f"s_lshl_b32 s8, s2, 3", f"s_add_u32 s8, s8, s{S_W}", "s_lshl_b32 s8, s8, 7", "v_mov_b32 v1, 0")
        for k in range(9):
            e(f"v_mov_b32 v2, s{S_STAMP+2*k}", f"v_mov_b32 v3, s{S_STAMP+2*k+1}", f"buffer_store_dwordx2 v[2:3], v1, s[4:7], s8 offen offset:{8*k}", "s_nop 1")
        e("s_memrealtime s[10:11]", "s_waitcnt lgkmcnt(0)", "v_mov_b32 v2, s10", "v_mov_b32 v3, s11", f"buffer_store_dwordx2 v[2:3], v1, s[4:7], s8 offen offset:72",
          "s_nop 1", "v_mov_b32 v2, s70", "v_mov_b32 v3, s71", f"buffer_store_dwordx2 v[2:3], v1, s[4:7], s8 offen offset:80")

    def slow(self):
        e = self.e
        self.lq = []
        S0 = V_S; BI = V_S + 32; G = V_S + 64; SV = V_S + 80; MA, MB = V_S + 90, V_S + 91; GV = V_S + 92
        SOFF = S_T0
        km, ktl = KB[0]
        m0a = self.m0(S0, km, 0, 0); m0b = self.m0(S0+16, km, 1, 0)
        kload = [f"buffer_load_dwordx2 {vr(ktl,2)}, v{V_ROW}, {sr(S_K,4)}, s{SOFF} offen offset:32",
                 f"buffer_load_dwordx4 {vr(km,4)}, v{V_ROW}, {sr(S_K,4)}, s{SOFF} offen"]
        e("; ---- fallback: pass 1 finds the true row max, pass 2 accumulates exp2(s - max) . V", "L_slow:", "s_waitcnt vmcnt(0) lgkmcnt(0)",
          [f"v_accvgpr_read_b32 v{G+k}, {vr(V_QT+k)}" for k in range(4)], "s_nop 1",
          f"v_permlane32_swap_b32 v{G}, v{G+2}", f"v_permlane32_swap_b32 v{G+1}, v{G+3}", "s_nop 1",
          f"v_accvgpr_write_b32 {vr(V_QT)}, v{G}", f"v_accvgpr_write_b32 {vr(V_QT+1)}, v{G+1}",
          f"v_mov_b32 v{MA}, 0xff800000", f"v_mov_b32 v{MB}, 0xff800000",
          f"s_mov_b32 s{SOFF}, s{S_HB}", f"s_add_u32 s{S_T1}, s{S_HB}, {HEAD_BYTES}",
          "L_slow1:", kload, "s_waitcnt vmcnt(0)",
          self.m2b(S0, ktl, 0, c="0"), "s_nop 15", "s_nop 1", m0a, m0b, "s_nop 11",
          [f"v_max3_f32 v{MA}, v{S0+2*k}, v{S0+2*k+1}, v{MA}" for k in range(8)],
          [f"v_max3_f32 v{MB}, v{S0+16+2*k}, v{S0+16+2*k+1}, v{MB}" for k in range(8)],
          f"s_add_u32 s{SOFF}, s{SOFF}, 1280", f"s_cmp_lt_u32 s{SOFF}, s{S_T1}", "s_cbranch_scc1 L_slow1",
          f"v_mov_b32 v{GV}, v{MA}", f"v_mov_b32 v{GV+1}, v{MB}", "s_nop 1",
          f"v_permlane32_swap_b32 v{MA}, v{GV}", f"v_permlane32_swap_b32 v{MB}, v{GV+1}", "s_nop 1",
          f"v_max_f32 v{MA}, v{MA}, v{GV}", f"v_max_f32 v{MB}, v{MB}, v{GV+1}",
          [[f"v_sub_f32 v{BI+k}, 0, v{MA}", f"v_sub_f32 v{BI+16+k}, 0, v{MB}"] for k in range(16)],
          [f"v_mov_b32 v{V_OK+k}, 0" for k in range(32)],
          f"v_and_b32 v{GV+1}, 31, v0", f"v_bfe_u32 v{GV}, v0, 5, 1", f"v_mul_u32_u24 v{GV}, 320, v{GV}",
          f"v_lshl_add_u32 v{GV}, v{GV+1}, 1, v{GV}",
          f"v_cmp_eq_u32 vcc, 20, v{GV+1}", f"v_mov_b32 v{GV+2}, 0x3f803f80", "s_nop 0",
          f"v_cndmask_b32 v{GV+2}, 0, v{GV+2}, vcc",
          [f"v_mov_b32 v{SV+k}, v{GV+2}" for k in range(8)],
          f"v_cmp_gt_u32 {sr(S_T2,2)}, 20, v{GV+1}",
          f"s_mov_b32 s{SOFF}, s{S_HB}",
          "L_slow2:", kload, f"s_mov_b64 exec, {sr(S_T2,2)}",
          [f"buffer_load_ushort v{G+8*s+jj}, v{GV}, {sr(S_V,4)}, s{SOFF} offen offset:{640*s+40*jj}" for s in range(2) for jj in range(8)],
          "s_waitcnt vmcnt(0)",
          [f"v_lshl_or_b32 v{SV+k}, v{G+2*k+1}, 16, v{G+2*k}" for k in range(8)],
          "s_mov_b64 exec, -1", "s_nop 3",
          self.m2b(S0, ktl, 0, c=vr(BI, 32)), "s_nop 15", "s_nop 1", m0a, m0b, "s_nop 11",
          [f"v_exp_f32 v{S0+k}, v{S0+k}" for k in range(32)],
          "s_nop 1", self.smf(0, 0, SV, S0), self.smf(1, 0, SV, S0+16), self.smf(0, 0, SV+4, S0+8), self.smf(1, 0, SV+4, S0+24),
          f"s_add_u32 s{SOFF}, s{SOFF}, 1280", f"s_cmp_lt_u32 s{SOFF}, s{S_T1}", "s_cbranch_scc1 L_slow2", "s_nop 11")
        e(self.finish_both(self.fin_groups(0), self.fin_groups(1), add=False))
        e("s_endpgm")

    def build(self):
        c = self.cfg
        self.plan()
        self.bars = sorted(set(c.bars + ([] if c.one else [c.ds - 1])))
        self.prologue(); self.main(); self.slow()
        hdr = open("cdna_kernels/%s.s.ref" % NAME).read().split("; @launch")[0]
        txt = hdr + f"; @launch grid=(256,1,1) block=(512,1,1) lds={LDS_BYTES}\n" + DOC
        txt += f'.amdgcn_target "amdgcn-amd-amdhsa--gfx950"\n.text\n.globl {NAME}_kernel\n.p2align 8\n.type {NAME}_kernel,@function\n{NAME}_kernel:\n'
        for x in self.L:
            txt += (x if not is_code(x) else "    " + x) + "\n"
        nv = (ACC_OFF + A_END + 7)//8*8
        assert nv <= 256
        txt += f""".section .rodata,"a"
.p2align 6
.amdhsa_kernel {NAME}_kernel
  .amdhsa_next_free_vgpr {nv}
  .amdhsa_next_free_sgpr 88
  .amdhsa_accum_offset {ACC_OFF}
  .amdhsa_group_segment_fixed_size 0
  .amdhsa_kernarg_size 48
  .amdhsa_user_sgpr_count 2
  .amdhsa_user_sgpr_kernarg_segment_ptr 1
  .amdhsa_system_sgpr_workgroup_id_x 1
.end_amdhsa_kernel
"""
        return txt

DOC = """; Fused attention, one workgroup (8 waves) per (head, 512-query quarter); K and V of the head stay in LDS.
"""

TRANS = ("v_exp_f32", "v_rcp_f32")
def check(seq, label=""):
    errs = []
    P = [parse(x) for x in seq]
    for i, (op, ops) in enumerate(P):
        is_m = op.startswith("v_mfma") or op.startswith("v_smfmac")
        is_valu = op.startswith("v_") and not is_m
        if not (is_m or is_valu): continue
        D = regs_of(ops[0])
        if op.startswith("v_permlane32_swap"): D |= regs_of(ops[1])
        passes = 16 if "_2b_" in op else 8
        C = (D if op.startswith("v_smfmac") else regs_of(ops[3])) if is_m else set()
        dist = 0
        for k in range(i+1, min(i+40, len(P))):
            op2, ops2 = P[k]
            m2 = op2.startswith("v_mfma") or op2.startswith("v_smfmac")
            valu2 = op2.startswith("v_") and not m2
            mem2 = op2.startswith("ds_") or op2.startswith("buffer_")
            allr = [regs_of(x) for x in ops2]
            need = 0
            if is_m:
                if m2:
                    D2 = allr[0]; A2 = allr[1] | allr[2]
                    C2 = D2 if op2.startswith("v_smfmac") else allr[3]
                    if op2.startswith("v_smfmac"): A2 |= allr[3]
                    p2 = 16 if "_2b_" in op2 else 8
                    if A2 & D: need = max(need, {8: 12, 16: 20}[passes])
                    if C2 & D and not (C2 == D and p2 == passes): need = max(need, {8: 10, 16: 18}[passes])
                elif valu2 or mem2:
                    touched = set().union(*allr) if allr else set()
                    if touched & D: need = max(need, {8: 12, 16: 20}[passes])
                    if valu2 and (allr[0] & C): need = max(need, {8: 7, 16: 15}[passes])
            else:
                if m2:
                    rd = allr[1] | allr[2] | allr[3] | (allr[0] if op2.startswith("v_smfmac") else set())
                    if rd & D: need = 2
                elif valu2:
                    rd = set().union(*allr[1:]) if len(allr) > 1 else set()
                    if op2.startswith("v_permlane"): rd |= allr[0]
                    if rd & D:
                        if op in TRANS and op2 not in TRANS: need = max(need, 1)
                        if op2.startswith("v_permlane"): need = max(need, 2)
                        if op2.startswith(("v_readfirstlane", "v_readlane")): need = max(need, 1)
                        if op.startswith("v_dot2") and not (op2 == op and (allr[3] & D) and not ((allr[1] | allr[2]) & D)): need = max(need, 3)
                    if op.startswith("v_dot2") and op2 != op and (allr[0] & D): need = max(need, 3)
                if op.startswith(("v_cmp", "v_readfirstlane")):
                    if valu2 and any(ops[0] == x for x in ops2[1:]): need = max(need, 2)
                    if op2.startswith("buffer_") and any(ops[0] == x for x in ops2): need = max(need, 5)
                    if op2.startswith("s_") and any(ops[0] == x for x in ops2[1:]): need = max(need, 1)
            if need > dist:
                errs.append(f"{label}: [{i}] {seq[i]}  ->  [{k}] {seq[k]} : need {need} have {dist}")
            dist += (int(ops2[0]) + 1) if op2 == "s_nop" else 1
            if op2 in ("s_branch", "s_endpgm"): break
    for i, (op, ops) in enumerate(P):
        if op in ("buffer_store_dwordx4", "ds_write_b128"):
            d = regs_of(ops[0] if op.startswith("buffer") else ops[1])
            for k in (i+1, i+2):
                if k < len(P) and P[k][0].startswith("v_") and regs_of(P[k][1][0]) & d: errs.append(f"{label}: store WAR {seq[i]} -> {seq[k]}")
        if op.startswith("s_") and ops and ops[0] == "m0" and i+1 < len(P) and P[i+1][0].startswith("buffer_load") and " lds" in seq[i+1]:
            errs.append(f"{label}: m0 hazard {seq[i]} -> {seq[i+1]}")
    return errs

def main():
    ap = argparse.ArgumentParser()
    ap.add_argument("-o", default="cdna_kernels/%s.s" % NAME)
    ap.add_argument("--stamps", default="")
    ap.add_argument("--ds", type=int, default=2)
    ap.add_argument("--de", type=int, default=1)
    ap.add_argument("--pa", type=int, default=-1)
    ap.add_argument("--p0", type=int, default=1)
    ap.add_argument("--b2", type=int, default=0)
    ap.add_argument("--b3", type=int, default=4)
    ap.add_argument("--obar", type=int, default=2)
    ap.add_argument("--k01", type=int, default=1)
    ap.add_argument("--pb", type=int, default=0)
    ap.add_argument("--b0x", type=int, default=3)
    ap.add_argument("--mini", type=int, default=2)
    ap.add_argument("--bm", type=int, default=0)
    ap.add_argument("--qs", type=int, default=5)
    ap.add_argument("--qb", type=int, default=5)
    ap.add_argument("--spread", type=int, default=1)
    ap.add_argument("--p63", type=int, default=3)
    ap.add_argument("--hprio", default="3,2,2,1,1,0,3,2,2")
    ap.add_argument("--priv", type=int, default=0)
    ap.add_argument("--ordb", type=int, default=0)
    ap.add_argument("--split", type=int, default=0)
    ap.add_argument("--nobar63", type=int, default=0)
    ap.add_argument("--pair", type=int, default=1)
    ap.add_argument("--fake", type=int, default=0)
    ap.add_argument("--cnt", type=int, default=1)
    ap.add_argument("--pub", type=int, default=5)
    ap.add_argument("--puba", type=int, default=2)
    ap.add_argument("--pubap", type=int, default=0)
    ap.add_argument("--chka", type=int, default=3)
    ap.add_argument("--probe", default="")
    ap.add_argument("--pf", type=int, default=0)
    ap.add_argument("--qflags", default="")
    ap.add_argument("--kflags", default="")
    ap.add_argument("--osa", action="store_true")
    ap.add_argument("--pad", type=int, default=0)
    ap.add_argument("--shadow", type=int, default=1)
    ap.add_argument("--one", type=int, default=0)
    ap.add_argument("--two", type=int, default=0)
    ap.add_argument("--prio2", default="")
    ap.add_argument("--p2pos", type=int, default=3)
    ap.add_argument("--dedup", type=int, default=0)
    ap.add_argument("--bias", default="4.0")
    ap.add_argument("--mfirst", type=int, default=0)
    ap.add_argument("--mpat", type=int, default=0)
    ap.add_argument("--ohack", type=float, default=0)
    ap.add_argument("--ohn", type=int, default=12)
    ap.add_argument("--dma_start", type=int, default=0)
    ap.add_argument("--dma_pos", default="0,3")
    ap.add_argument("--bars", default="2,9")
    ap.add_argument("--loopbar", type=int, default=27)
    ap.add_argument("--prio", default="3,2,2,1,1,0")
    ap.add_argument("--align", type=int, default=0)
    ap.add_argument("--stflags", default="sc1")
    c = ap.parse_args()
    c.dma_pos = [int(x) for x in c.dma_pos.split(",")]
    c.hprio = [int(x) for x in c.hprio.split(",")] if c.hprio else []
    c.qflags = "".join(" " + x for x in c.qflags.split(",") if x); c.kflags = "".join(" " + x for x in c.kflags.split(",") if x)
    c.prio2 = [int(x) for x in c.prio2.split(",")] if c.prio2 else []
    c.bars = [int(x) for x in c.bars.split(",")] if c.bars else []
    c.prio = [int(x) for x in c.prio.split(",")] if c.prio else []
    if c.stamps == "std": c.stamps = "start,setup,b0,s1,s8,loop,s63,fin,end"
    c.stamps = c.stamps.split(",") if c.stamps else []
    g = Gen(c)
    txt = g.build()
    code = lambda L: [x for x in L if is_code(x)]
    errs = check(code(g.L), "linear")
    errs += check(code(g.L[g.loop_start:g.loop_end] + g.L[g.loop_start:g.loop_end]), "loop")
    for x in errs: print("HAZARD", x)
    open(c.o, "w").write(txt)
    print("wrote", c.o, "instrs", len(code(g.L)), "vgprs", V_END, "acc_off", ACC_OFF, "agprs", A_END, "kb", [g.kb[s] for s in range(-1, 10)], "vb", [g.vb[s] for s in range(1, 10)], "tail kb", [g.kb[s] for s in range(55, 63)], "vb", [g.vb[s] for s in range(55, 65)])
main()
```
